```python
import torch

def _softmax(x, axis=-1):
    return torch.softmax(x, dim=axis)
def _gelu(x):
    return torch.nn.functional.gelu(x, approximate="tanh")
def _silu(x):
    return torch.nn.functional.silu(x)
def _sigmoid(x):
    return torch.sigmoid(x)
def _layernorm(x, axis=-1, eps=1e-5):
    m = x.mean(dim=axis, keepdim=True)
    v = x.var(dim=axis, keepdim=True, unbiased=False)
    return (x - m) / torch.sqrt(v + eps)
def _scatter_add(tgt, idx, src, axis=0):
    return tgt.clone().index_add_(axis, idx, src)
def _segment_sum(src, seg, n):
    out = torch.zeros((n,) + src.shape[1:], dtype=src.dtype)
    return out.index_add_(0, seg, src)
def _pad(x, pw):
    flat = tuple(v for pair in reversed(pw) for v in pair)
    return torch.nn.functional.pad(x, flat)

kernel_name = 'sequential_preLN__mha_block_cached__glu_gated_geglu__decode'

def setup_inputs():

    _w = (lambda a: (lambda t: t.to(torch.bfloat16) if t.is_floating_point() else t)(torch.as_tensor(a)))
    def _A_setup():
        B, Sq, D = 1, 1, 576
        H, Sk, Dh = 32, 16384, 128
        return {
            "x": _w((lambda *s: torch.randn(*s, dtype=torch.bfloat16) * 0.05)(B, Sq, D)),
            "k_cache": _w((lambda *s: torch.randn(*s, dtype=torch.bfloat16) * 3.2)(B, H, Sk, Dh)),
            "v_cache": _w((lambda *s: torch.randn(*s, dtype=torch.bfloat16) * 1.6)(B, H, Sk, Dh)),
            "wq": _w((lambda *s: torch.randn(*s, dtype=torch.bfloat16) * 3.2)(D, H * Dh) * (D ** -0.5)),
            "wo": _w((lambda *s: torch.randn(*s, dtype=torch.bfloat16) * 1.6)(H * Dh, D) * ((H * Dh) ** -0.5)),
        }
    _A_in = _A_setup()

    def _B_setup():
        B, S, Dm, Df = 1, 1, 576, 4608
        return {
            "x": _w((lambda *s: torch.randn(*s, dtype=torch.bfloat16) * 0.05)(B, S, Dm)),
            "w_gate": _w((lambda *s: torch.randn(*s, dtype=torch.bfloat16) * 1.6)(Dm, Df) * (Dm ** -0.5)),
            "w_up": _w((lambda *s: torch.randn(*s, dtype=torch.bfloat16) * 1.6)(Dm, Df) * (Dm ** -0.5)),
            "w_down": _w((lambda *s: torch.randn(*s, dtype=torch.bfloat16) * 1.6)(Df, Dm) * (Df ** -0.5)),
        }
    _B_in = _B_setup()

    return {
        "A_x": _A_in["x"],
        "A_k_cache": _A_in["k_cache"],
        "A_v_cache": _A_in["v_cache"],
        "A_wq": _A_in["wq"],
        "A_wo": _A_in["wo"],
        "B_x": _B_in["x"],
        "B_w_gate": _B_in["w_gate"],
        "B_w_up": _B_in["w_up"],
        "B_w_down": _B_in["w_down"],
    }

def reference(A_x, A_k_cache, A_v_cache, A_wq, A_wo, B_x, B_w_gate, B_w_up, B_w_down):
    def _A_ref(x, k_cache, v_cache, wq, wo):
        B, Sq, D = x.shape
        H, Dh = 32, 128
        q = (lambda x, *d: x.permute(*d))((x @ wq).reshape(B, Sq, H, Dh), 0, 2, 1, 3)
        scores = torch.einsum("bhqd,bhkd->bhqk", q, k_cache) * (Dh ** -0.5)
        p = _softmax(scores, axis=-1)
        o = torch.einsum("bhqk,bhkd->bhqd", p, v_cache)
        return (lambda x, *d: x.permute(*d))(o, 0, 2, 1, 3).reshape(B, Sq, H * Dh) @ wo

    def _B_ref(x, w_gate, w_up, w_down):
        g = torch.einsum("bsd,df->bsf", x, w_gate)
        u = torch.einsum("bsd,df->bsf", x, w_up)
        h = _gelu(g) * u
        return torch.einsum("bsf,fd->bsd", h, w_down)

    x = A_x
    h = x + _A_ref(_layernorm(x, axis=-1), A_k_cache, A_v_cache, A_wq, A_wo)
    h2 = h + _B_ref(_layernorm(h, axis=-1), B_w_gate, B_w_up, B_w_down)
    return h2
```

```python
import re

_REG = re.compile(r'\b([vsa])(\d+)\b|\b([vsa])\[(\d+):(\d+)\]|\b(vcc|exec|m0|scc|vcc_lo|vcc_hi|exec_lo|exec_hi)\b')

def regs_of(op):
    out = set()
    for m in _REG.finditer(op):
        if m.group(1):
            out.add((m.group(1), int(m.group(2))))
        elif m.group(3):
            for i in range(int(m.group(4)), int(m.group(5)) + 1):
                out.add((m.group(3), i))
        else:
            n = m.group(6)
            if n.startswith('vcc'):
                out.add(('s', 106)); out.add(('s', 107))
            elif n.startswith('exec'):
                out.add(('x', 0))
            elif n == 'm0':
                out.add(('m', 0))
    return out

TRANS = ('v_exp_f32', 'v_log_f32', 'v_rcp_f32', 'v_rsq_f32', 'v_sqrt_f32', 'v_sin_f32', 'v_cos_f32', 'v_rcp_iflag_f32')

def split_ops(rest):
    ops = []; depth = 0; cur = ''
    for ch in rest:
        if ch == '[': depth += 1
        if ch == ']': depth -= 1
        if ch == ',' and depth == 0:
            ops.append(cur.strip()); cur = ''
        else:
            cur += ch
    if cur.strip(): ops.append(cur.strip())
    return ops

class Ins:
    __slots__ = ('text', 'mn', 'kind', 'w', 'r', 'srcC', 'srcAB', 'dpp', 'ws', 'passes', 'wide_store', 'lanesel', 'dppsrc', 'ldsdma')
    def __init__(self, text):
        self.text = text
        t = text.split(';')[0].strip()
        parts = t.split(None, 1)
        mn = parts[0]; rest = parts[1] if len(parts) > 1 else ''
        self.mn = mn
        ops = split_ops(rest)
        self.dpp = ('_dpp' in mn) or ('row_' in rest) or ('quad_perm' in rest)
        self.ws = 1
        self.srcC = set(); self.srcAB = set(); self.passes = 0
        self.wide_store = False; self.lanesel = set(); self.dppsrc = set(); self.ldsdma = False
        w = set(); r = set()
        base = mn.replace('_e32', '').replace('_e64', '').replace('_dpp', '').replace('_sdwa', '')
        if mn == 's_nop':
            self.kind = 'nop'; self.ws = int(ops[0], 0) + 1
        elif mn.startswith('v_mfma'):
            self.kind = 'mfma'
            w = regs_of(ops[0]); self.srcAB = regs_of(ops[1]) | regs_of(ops[2]); self.srcC = regs_of(ops[3])
            r = self.srcAB | self.srcC
            self.passes = 8 if '32x32' in mn else 4
        elif mn.startswith('v_'):
            self.kind = 'valu'
            if base.startswith('v_dot'): self.kind = 'dot'
            if base in TRANS: self.kind = 'trans'
            if base.startswith('v_permlane'):
                self.kind = 'perm'
                w = regs_of(ops[0]) | regs_of(ops[1]); r = set(w)
            elif base.startswith('v_cmp'):
                w = regs_of(ops[0]);
                for o in ops[1:]: r |= regs_of(o)
                if base.startswith('v_cmpx'): w.add(('x', 0))
            elif base in ('v_add_co_u32', 'v_sub_co_u32', 'v_addc_co_u32', 'v_subb_co_u32', 'v_subrev_co_u32', 'v_div_scale_f32'):
                w = regs_of(ops[0]) | regs_of(ops[1])
                for o in ops[2:]: r |= regs_of(o)
            elif base in ('v_readlane_b32', 'v_readfirstlane_b32'):
                self.kind = 'readlane'
                w = regs_of(ops[0]); r = regs_of(ops[1])
                if len(ops) > 2:
                    self.lanesel = regs_of(ops[2]); r |= self.lanesel
            elif base == 'v_writelane_b32':
                w = regs_of(ops[0]); r = regs_of(ops[1]) | regs_of(ops[0])
                self.lanesel = regs_of(ops[2]); r |= self.lanesel
            elif base == 'v_nop':
                self.kind = 'nop'
            else:
                w = regs_of(ops[0])
                for o in ops[1:]: r |= regs_of(o)
                if base in ('v_fmac_f32', 'v_dot2c_f32_bf16', 'v_pk_fmac_f16'):
                    r |= w
                if base == 'v_dot2c_f32_bf16':
                    self.srcC = set(w); self.srcAB = regs_of(ops[1]) | regs_of(ops[2])
                if base == 'v_dot2_f32_bf16':
                    self.srcC = regs_of(ops[3]); self.srcAB = regs_of(ops[1]) | regs_of(ops[2])
                if base == 'v_cndmask_b32' and len(ops) == 3:
                    r |= regs_of('vcc')
                if self.dpp:
                    self.dppsrc = regs_of(ops[1])
                    r |= w
        elif mn.startswith('ds_'):
            self.kind = 'ds'
            if mn.startswith('ds_read') or mn.startswith('ds_bpermute') or mn.startswith('ds_permute') or mn.startswith('ds_swizzle'):
                w = regs_of(ops[0])
                for o in ops[1:]: r |= regs_of(o)
            else:
                for o in ops: r |= regs_of(o)
        elif mn.startswith('buffer_') or mn.startswith('global_'):
            self.kind = 'vmem'
            islds = bool(re.search(r'\blds\b', rest)) or '_lds_' in mn
            self.ldsdma = islds
            if ('load' in mn and not islds) or ('atomic' in mn and mn.startswith('global_') and re.search(r'\bsc0\b', rest)):
                w = regs_of(ops[0])
                for o in ops[1:]: r |= regs_of(o)
            else:
                for o in ops: r |= regs_of(o)
                if 'atomic' in mn and mn.startswith('buffer_') and re.search(r'\bsc0\b', rest):
                    w = regs_of(ops[0])
            if islds: r.add(('m', 0))
            if 'store' in mn and ('x4' in mn or 'x3' in mn):
                self.wide_store = True
                self.srcAB = regs_of(ops[0]) if mn.startswith('buffer_') else regs_of(ops[1])
        elif mn.startswith('s_'):
            self.kind = 'salu'
            nodst = ('s_cmp', 's_cbranch', 's_branch', 's_waitcnt', 's_barrier', 's_setprio', 's_sleep', 's_endpgm', 's_bitcmp', 's_setpc', 's_sendmsg')
            if any(mn.startswith(p) for p in nodst):
                for o in ops: r |= regs_of(o)
            else:
                if ops:
                    w = regs_of(ops[0])
                    for o in ops[1:]: r |= regs_of(o)
                if 'saveexec' in mn:
                    w.add(('x', 0))
            if mn.startswith('s_load') or mn.startswith('s_memtime') or mn.startswith('s_memrealtime') or mn.startswith('s_buffer_load'):
                self.kind = 'smem'
        else:
            raise ValueError('unknown instr ' + text)
        self.w = w; self.r = r

VALU_KINDS = ('valu', 'dot', 'trans', 'perm', 'readlane')

def need(p, c):
    n = 0
    pv = p.kind in VALU_KINDS
    cv = c.kind in VALU_KINDS
    pw_v = {x for x in p.w if x[0] == 'v'}
    pw_s = {x for x in p.w if x[0] == 's'}
    if pv:
        if c.dpp and cv and (pw_v & c.r): n = max(n, 2)
        if c.kind == 'readlane' and (pw_v & c.r): n = max(n, 1)
        if pw_s:
            if cv and (pw_s & c.r): n = max(n, 2)
            if c.lanesel & pw_s: n = max(n, 4)
            if c.kind == 'vmem' and (pw_s & c.r): n = max(n, 5)
            if c.mn.startswith('v_div_fmas') and (('s', 106) in pw_s): n = max(n, 4)
        if p.kind == 'trans' and (cv or c.kind == 'mfma') and c.kind != 'trans' and (pw_v & c.r): n = max(n, 1)
        if c.kind == 'perm' and (pw_v & c.r): n = max(n, 2)
        if c.kind == 'mfma' and (pw_v & c.r): n = max(n, 2)
        if ('x', 0) in p.w:
            if c.dpp: n = max(n, 5)
            if c.kind in ('readlane', 'perm', 'mfma'): n = max(n, 4)
            if cv and ('x', 0) in c.r: n = max(n, 2)
        if p.kind == 'dot':
            same = (p.mn.replace('_e32', '') == c.mn.replace('_e32', ''))
            if same:
                if pw_v & c.srcAB: n = max(n, 3)
            else:
                if pw_v & (c.r | c.w): n = max(n, 3)
    if p.kind == 'mfma':
        d = pw_v
        tab_rw = {4: 8, 8: 12}[p.passes]
        if c.kind == 'mfma':
            if d & c.srcAB: n = max(n, tab_rw)
            if d & c.srcC:
                if not (c.srcC == d and c.passes == p.passes): n = max(n, {4: 6, 8: 10}[p.passes])
            elif d & c.w: n = max(n, tab_rw)
        else:
            if d & (c.r | c.w): n = max(n, tab_rw)
        if cv and (p.srcC & c.w): n = max(n, {4: 3, 8: 7}[p.passes])
    if p.wide_store and (p.srcAB & c.w):
        n = max(n, 2 if cv else 1)
    if p.kind == 'salu' and ('m', 0) in p.w and c.ldsdma: n = max(n, 1)
    return n

class Asm:
    def __init__(self):
        self.lines = []
        self.hist = []
        self.nops = 0
    def raw(self, s):
        self.lines.append(s)
    def label(self, name):
        self.lines.append(name + ':')
    def comment(self, s):
        self.lines.append('    ; ' + s)
    def __call__(self, text):
        for t in text.strip().split('\n'):
            t = t.strip()
            if not t or t.startswith(';'):
                continue
            if t.endswith(':'):
                self.label(t[:-1]); continue
            self._emit(t)
    def _emit(self, t):
        c = Ins(t)
        dist = 0; pad = 0
        for p in reversed(self.hist):
            n = need(p, c)
            if n - dist > pad: pad = n - dist
            dist += p.ws
            if dist >= 20: break
        while pad > 0:
            k = min(pad, 16)
            nop = Ins('s_nop %d' % (k - 1))
            self.lines.append('    s_nop %d' % (k - 1))
            self.hist.append(nop); self.nops += 1
            pad -= k
        self.lines.append('    ' + t)
        self.hist.append(c)
        if len(self.hist) > 40: self.hist = self.hist[-40:]
    def fence(self, n=12):
        self._emit('s_nop %d' % (n - 1))
    def text(self):
        return '\n'.join(self.lines) + '\n'
```

```python
import sys, struct
from asmlib import Asm

KN = 'sequential_preLN__mha_block_cached__glu_gated_geglu__decode_kernel'

def f32(x):
    return '0x%08x' % struct.unpack('<I', struct.pack('<f', x))[0]

class Cfg:
    depth = 4
    nt = True
    bw_late = False
    stamps = False
    interleave = True
    spin_max = 2000000
    def __init__(self, **kw):
        for k, v in kw.items():
            assert hasattr(self, k), k
            setattr(self, k, v)

PART = 0
ML = 131072
YO = 135168
OUTP = 155648
TS = 524288
WS_BYTES = 1 << 20
OOB = 0x40000000
QP = 0; QB = 4096; WC = 0; WML = 4352; OB = 4608; ST = 5888; HH = 5952
WB = 6144
LDS_BYTES = WB + 110592
LOG2E = 1.4426950408889634
SCALE = 128 ** -0.5

def gen(cfg):
    a = Asm()
    hdr = open('sequential_preLN__mha_block_cached__glu_gated_geglu__decode.s.ref').read().split('\n')
    for l in hdr:
        if l.startswith('; @launch'): break
        a.raw(l)
    a.raw('; @launch grid=(256,1,1) block=(512,1,1) lds=%d' % LDS_BYTES)
    a.raw('.amdgcn_target "amdgcn-amd-amdhsa--gfx950"\n.text\n.globl %s\n.p2align 8\n.type %s,@function' % (KN, KN))
    a.label(KN)
    D = cfg.depth
    NT = ' nt' if cfg.nt else ''
    LANE, G, I, L16 = 1, 2, 3, 4
    Q = 5
    MK = 9
    ACC = 14
    M, L, CNT = 22, 23, 13
    T = 24
    KV = 48
    def Kr(s): return KV + 32 * s
    def Vr(s): return KV + 32 * s + 16
    WQR = KV + 64
    XR = 184
    XS = 194
    XN = 204
    sK, sV, sX, sWQ, sWO, sWG, sWU, sWS, sOUT, sDBG, sWD = 40, 44, 48, 52, 56, 60, 64, 68, 72, 76, 80
    def srd(s): return 's[%d:%d]' % (s, s + 3)
    def vr(b, n): return 'v[%d:%d]' % (b, b + n - 1)
    stampn = [0]
    def stamp(k):
        if cfg.stamps:
            a('s_memrealtime s[%d:%d]' % (92 + 2 * k, 93 + 2 * k))
    def allreduce(v, t, op='v_add_f32'):
        for r in (8, 4, 2, 1):
            a('%s_dpp v%d, v%d, v%d row_ror:%d row_mask:0xf bank_mask:0xf' % (op, v, v, v, r))
        a('v_mov_b32 v%d, v%d' % (t, v)); a('v_permlane16_swap_b32 v%d, v%d' % (v, t)); a('%s v%d, v%d, v%d' % (op, v, v, t))
        a('v_mov_b32 v%d, v%d' % (t, v)); a('v_permlane32_swap_b32 v%d, v%d' % (v, t)); a('%s v%d, v%d, v%d' % (op, v, v, t))
    def load_tile(s, which):
        base = Kr(s) if which == 'K' else Vr(s)
        for c in range(4):
            a('buffer_load_dwordx4 %s, v%d, %s, s9 offen offset:%d%s' % (vr(base + 4 * c, 4), L16, srd(sK if which == 'K' else sV), c * 1024, NT))
    def mk_srd(s, lo, nbytes):
        a('s_mov_b32 s%d, s%d' % (s, lo)); a('s_mov_b32 s%d, s%d' % (s + 1, lo + 1))
        a('s_mov_b32 s%d, %d' % (s + 2, nbytes)); a('s_mov_b32 s%d, 0x20000' % (s + 3))
    tile_stride = 262144 if cfg.interleave else 32768

    a('''
    s_cmp_ge_u32 s2, 256
    s_cbranch_scc1 L_END
    s_load_dwordx16 s[16:31], s[0:1], 0
    s_load_dwordx8 s[32:39], s[0:1], 64
    ''')
    stamp(0)
    a('''
    v_and_b32 v1, 63, v0
    v_lshrrev_b32 v24, 6, v0
    v_lshlrev_b32 v4, 4, v1
    v_readfirstlane_b32 s3, v24
    v_lshrrev_b32 v2, 4, v1
    v_and_b32 v3, 15, v1
    s_and_b32 s4, s2, 7
    s_lshr_b32 s5, s2, 3
    s_and_b32 s6, s5, 3
    s_lshl_b32 s4, s4, 2
    s_add_u32 s4, s4, s6
    s_lshr_b32 s5, s5, 2
    s_lshl_b32 s6, s4, 22
    ''')
    a('s_lshl_b32 s9, s5, %d' % (15 if cfg.interleave else 19))
    a('''
    s_lshl_b32 s8, s3, 12
    s_add_u32 s9, s9, s8
    s_mov_b32 s42, 0x400000
    s_mov_b32 s43, 0x20000
    s_mov_b32 s46, 0x400000
    s_mov_b32 s47, 0x20000
    s_waitcnt lgkmcnt(0)
    s_add_u32 s40, s18, s6
    s_addc_u32 s41, s19, 0
    s_add_u32 s44, s20, s6
    s_addc_u32 s45, s21, 0
    ''')
    if not cfg.interleave:
        a('s_add_u32 s10, s5, 1'); a('s_lshl_b32 s42, s10, 19'); a('s_mov_b32 s46, s42')
    mk_srd(sX, 16, 1152)
    a('v_lshlrev_b32 v24, 1, v1')
    for k in range(9):
        a('buffer_load_ushort v%d, v24, %s, 0 offen offset:%d' % (XS + k, srd(sX), k * 128))
    a('s_mul_i32 s10, s3, 144')
    a('v_mul_u32_u24 v25, 36, v2')
    a('buffer_load_dwordx4 %s, v25, %s, s10 offen' % (vr(XR, 4), srd(sX)))
    a('buffer_load_dwordx4 %s, v25, %s, s10 offen offset:16' % (vr(XR + 4, 4), srd(sX)))
    a('buffer_load_dword v%d, v25, %s, s10 offen offset:32' % (XR + 8, srd(sX)))
    load_tile(0, 'K'); load_tile(0, 'V')
    a('s_add_u32 s9, s9, %d' % tile_stride)
    a('''
    s_mov_b32 s11, 0
    s_and_b32 s12, s2, 7
    s_mul_i32 s12, s12, 18
    s_lshr_b32 s13, s2, 3
    s_add_u32 s12, s12, s13
    s_cmp_lt_u32 s2, 144
    s_cbranch_scc1 L_role_done
    s_mov_b32 s11, 1
    s_and_b32 s12, s2, 7
    s_sub_u32 s13, s2, 144
    s_lshr_b32 s13, s13, 3
    s_cmp_lt_u32 s2, 216
    s_cbranch_scc1 L_role_done
    s_mov_b32 s11, 2
    s_sub_u32 s12, s2, 216
    s_cmp_lt_u32 s2, 252
    s_cbranch_scc1 L_role_done
    s_mov_b32 s11, 3
    L_role_done:
    ''')
    mk_srd(sWS, 38, WS_BYTES)
    mk_srd(sWQ, 22, 576 * 4096 * 2)
    mk_srd(sWO, 24, 4096 * 576 * 2)
    mk_srd(sWG, 28, 576 * 4608 * 2)
    mk_srd(sWU, 30, 576 * 4608 * 2)
    mk_srd(sWD, 32, 4608 * 576 * 2)
    mk_srd(sOUT, 34, 1152)
    mk_srd(sDBG, 36, 256)
    a('s_lshl_b32 s14, s4, 3'); a('s_add_u32 s14, s14, s5')
    a('''
    v_mov_b32 v28, -1
    v_mov_b32 v29, -1
    v_mov_b32 v30, -1
    v_mov_b32 v31, -1
    v_mov_b32 v26, %d
    v_mov_b32 v27, %d
    s_cmp_eq_u32 s3, 0
    s_cbranch_scc0 L_clr1
    s_lshl_b32 s10, s14, 9
    v_add_u32 v24, s10, v4
    v_cmp_gt_u32 vcc, 32, v1
    v_cndmask_b32 v26, v27, v24, vcc
    s_lshl_b32 s10, s14, 4
    s_add_u32 s10, s10, %d
    v_mov_b32 v24, s10
    v_cmp_eq_u32 vcc, 32, v1
    v_cndmask_b32 v26, v26, v24, vcc
    s_branch L_clr_st
    L_clr1:
    s_cmp_eq_u32 s11, 1
    s_cbranch_scc0 L_clr2
    s_cmp_eq_u32 s3, 1
    s_cbranch_scc0 L_clr_st
    s_mul_i32 s10, s12, 2304
    s_lshl_b32 s15, s13, 8
    s_add_u32 s10, s10, s15
    s_add_u32 s10, s10, %d
    v_add_u32 v24, s10, v4
    v_cmp_gt_u32 vcc, 16, v1
    v_cndmask_b32 v26, v27, v24, vcc
    s_branch L_clr_st
    L_clr2:
    s_cmp_eq_u32 s11, 0
    s_cbranch_scc0 L_clr_st
    s_cmp_lt_u32 s3, 2
    s_cbranch_scc1 L_clr_st
    v_subrev_u32 v24, 128, v0
    v_lshrrev_b32 v25, 2, v24
    v_mul_u32_u24 v25, 9216, v25
    v_and_b32 v32, 3, v24
    v_lshl_add_u32 v25, v32, 4, v25
    s_lshl_b32 s10, s12, 6
    s_add_u32 s10, s10, %d
    v_add_u32 v25, s10, v25
    v_cmp_gt_u32 vcc, 144, v24
    v_cndmask_b32 v26, v27, v25, vcc
    L_clr_st:
    ''' % (OOB, OOB, ML, YO, OUTP))
    a.fence(4)
    a('buffer_store_dwordx4 v[28:31], v26, %s, 0 offen sc1' % srd(sWS))
    a('''
    v_mul_u32_u24 v24, %d, v2
    v_lshl_add_u32 v24, v3, 4, v24
    s_mul_i32 s10, s3, %d
    s_lshl_b32 s15, s4, 8
    s_add_u32 s10, s10, s15
    ''' % (18 * 8192, 72 * 8192))
    for t in range(18):
        a('buffer_load_dwordx4 %s, v24, %s, s10 offen' % (vr(WQR + 4 * t, 4), srd(sWQ)))
        if t < 17: a('s_add_u32 s10, s10, 8192')
    load_tile(1, 'K'); load_tile(1, 'V')
    a('s_add_u32 s9, s9, %d' % tile_stride)
    n_after_wq = 8

    def weight_dma(role):
        n = 0
        a('''
        v_lshrrev_b32 v34, 3, v1
        v_mul_u32_u24 v34, 1152, v34
        v_and_b32 v35, 1, v2
        v_lshlrev_b32 v35, 1, v35
        v_and_b32 v32, 7, v1
        v_xor_b32 v32, v32, v35
        v_xor_b32 v33, 4, v32
        v_lshl_add_u32 v32, v32, 4, v34
        v_lshl_add_u32 v33, v33, 4, v34
        ''')
        if role == 'A':
            a('''
            s_lshl_b32 s10, s12, 9
            s_lshl_b32 s15, s3, 6
            s_add_u32 s10, s10, s15
            s_mul_i32 s10, s10, 1152
            s_lshl_b32 s15, s13, 7
            s_add_u32 s10, s10, s15
            s_lshl_b32 s15, s3, 13
            s_add_u32 s15, s15, %d
            ''' % WB)
            for k in range(8):
                a('s_mov_b32 m0, s15')
                a('buffer_load_dwordx4 v%d, %s, s10 offen%s lds' % (32 + (k & 1), srd(sWO), NT))
                if k < 7:
                    a('s_add_u32 s10, s10, %d' % (8 * 1152)); a('s_add_u32 s15, s15, 1024')
                n += 1
        else:
            a('''
            v_lshrrev_b32 v34, 2, v1
            v_mul_u32_u24 v34, 9216, v34
            v_lshrrev_b32 v35, 5, v1
            v_and_b32 v36, 3, v1
            v_xor_b32 v35, v35, v36
            s_lshr_b32 s15, s3, 2
            s_lshl_b32 s15, s15, 1
            v_xor_b32 v35, s15, v35
            v_lshl_add_u32 v34, v35, 4, v34
            s_and_b32 s15, s3, 3
            s_mul_i32 s10, s15, %d
            s_lshl_b32 s84, s12, 6
            s_add_u32 s10, s10, s84
            s_mul_i32 s15, s3, 9216
            s_add_u32 s15, s15, %d
            s_cmp_lt_u32 s3, 4
            s_cselect_b32 s84, s60, s64
            s_cselect_b32 s85, s61, s65
            s_mov_b32 s86, %d
            s_mov_b32 s87, 0x20000
            ''' % (9 * 16 * 9216, WB, 576 * 4608 * 2))
            for k in range(9):
                a('s_mov_b32 m0, s15')
                a('buffer_load_dwordx4 v34, s[84:87], s10 offen%s lds' % NT)
                if k < 8:
                    a('s_add_u32 s10, s10, %d' % (16 * 9216)); a('s_add_u32 s15, s15, 1024')
                n += 1
            a('''
            s_and_b32 s84, s3, 3
            s_lshl_b32 s10, s12, 5
            s_lshl_b32 s85, s84, 3
            s_add_u32 s10, s10, s85
            s_mul_i32 s10, s10, 1152
            s_lshr_b32 s85, s3, 2
            s_lshl_b32 s86, s85, 7
            s_add_u32 s10, s10, s86
            s_lshl_b32 s15, s85, 12
            s_lshl_b32 s86, s84, 10
            s_add_u32 s15, s15, s86
            s_add_u32 s15, s15, %d
            s_and_b32 s84, s3, 1
            s_cmp_eq_u32 s84, 0
            s_cselect_b64 s[84:85], -1, 0
            v_cndmask_b32 v34, v33, v32, s[84:85]
            ''' % (WB + 73728))
            for k in range(5):
                if k == 4:
                    a('s_cmp_ge_u32 s3, 4'); a('s_cbranch_scc1 L_dn_skip_%s' % lbl_sfx[0])
                a('s_mov_b32 m0, s15')
                a('buffer_load_dwordx4 v34, %s, s10 offen%s lds' % (srd(sWD), NT))
                if k < 4:
                    a('s_add_u32 s10, s10, 256'); a('s_add_u32 s15, s15, 8192')
                n += 1
            a.label('L_dn_skip_%s' % lbl_sfx[0])
        return n
    lbl_sfx = ['e']

    a('''
    v_and_b32 v24, 1, v1
    v_mov_b32 v25, 0xffff
    v_mov_b32 v26, 0xffff0000
    v_cmp_eq_u32 vcc, 1, v24
    v_cndmask_b32 v25, v25, v26, vcc
    v_bfe_u32 v24, v1, 1, 2
    ''')
    for r in range(4):
        a('v_cmp_eq_u32 vcc, %d, v24' % r)
        a('v_cndmask_b32 v%d, 0, v25, vcc' % (MK + r))
    a('s_waitcnt vmcnt(%d)' % (3 + 8 + 1 + 18 + n_after_wq))
    for k in range(9):
        a('v_lshlrev_b32 v%d, 16, v%d' % (XS + k, XS + k))
    a('v_add_f32 v24, v%d, v%d' % (XS, XS + 1))
    for k in range(2, 9):
        a('v_add_f32 v24, v24, v%d' % (XS + k))
    allreduce(24, 25)
    a('v_mul_f32 v24, %s, v24' % f32(1.0 / 576))
    a('v_sub_f32 v26, v%d, v24' % XS); a('v_mul_f32 v27, v26, v26')
    for k in range(1, 9):
        a('v_sub_f32 v26, v%d, v24' % (XS + k)); a('v_fmac_f32 v27, v26, v26')
    allreduce(27, 25)
    a('v_mul_f32 v27, %s, v27' % f32(1.0 / 576))
    def ln_finish(mean, var, mb, sd, rc, t):
        a('v_cvt_pk_bf16_f32 v%d, v%d, v%d' % (t, mean, var))
        a('v_lshlrev_b32 v%d, 16, v%d' % (mb, t))
        a('v_and_b32 v%d, 0xffff0000, v%d' % (t, t))
        a('v_add_f32 v%d, %s, v%d' % (t, f32(1e-5), t))
        a('v_cvt_pk_bf16_f32 v%d, v%d, v%d' % (t, t, t))
        a('v_lshlrev_b32 v%d, 16, v%d' % (t, t))
        a('v_sqrt_f32 v%d, v%d' % (t, t))
        a('v_cvt_pk_bf16_f32 v%d, v%d, v%d' % (t, t, t))
        a('v_lshlrev_b32 v%d, 16, v%d' % (sd, t))
        a('v_rcp_f32 v%d, v%d' % (rc, sd))
    ln_finish(24, 27, 28, 29, 30, 25)
    a('s_waitcnt vmcnt(%d)' % (8 + 1 + 18 + n_after_wq))
    for k in range(9):
        a('v_lshlrev_b32 v32, 16, v%d' % (XR + k))
        a('v_and_b32 v33, 0xffff0000, v%d' % (XR + k))
        a('v_sub_f32 v32, v32, v28'); a('v_sub_f32 v33, v33, v28')
        a('v_cvt_pk_bf16_f32 v34, v32, v33')
        a('v_lshlrev_b32 v32, 16, v34'); a('v_and_b32 v33, 0xffff0000, v34')
        a('v_mul_f32 v34, v32, v30'); a('v_mul_f32 v35, v33, v30')
        a('v_fma_f32 v32, -v34, v29, v32'); a('v_fma_f32 v33, -v35, v29, v33')
        a('v_fmac_f32 v34, v32, v30'); a('v_fmac_f32 v35, v33, v30')
        a('v_cvt_pk_bf16_f32 v%d, v34, v34' % (XN + 2 * k)); a('v_cvt_pk_bf16_f32 v%d, v35, v35' % (XN + 2 * k + 1))
    a('s_waitcnt vmcnt(%d)' % n_after_wq)
    for t in range(18):
        b = 32 + 4 * (t & 1)
        for r in range(4):
            a('v_and_b32 v%d, v%d, v%d' % (b + r, XN + t, MK + r))
        a('v_mfma_f32_16x16x32_bf16 v[24:27], %s, %s, %s' % (vr(WQR + 4 * t, 4), vr(b, 4), '0' if t == 0 else 'v[24:27]'))
    a('''
    v_and_b32 v40, 7, v1
    v_lshl_add_u32 v40, v2, 5, v40
    v_lshlrev_b32 v40, 2, v40
    s_lshl_b32 s10, s3, 9
    v_add_u32 v40, s10, v40
    ''')
    for r in range(4):
        a('ds_write_b32 v40, v%d offset:%d' % (24 + r, QP + r * 32))
    for s in range(2, D):
        load_tile(s, 'K'); load_tile(s, 'V')
        a('s_add_u32 s9, s9, %d' % tile_stride)
    a('s_waitcnt lgkmcnt(0)')
    a('s_barrier')
    a('s_cmp_ge_u32 s3, 2'); a('s_cbranch_scc1 L_q_skip')
    a('v_lshlrev_b32 v40, 2, v0')
    for k in range(8):
        a('ds_read_b32 v%d, v40 offset:%d' % (24 + k, QP + k * 512))
    a('s_cmp_eq_u32 s3, 0'); a('s_cbranch_scc0 L_no_cnt')
    a('''
    s_mov_b64 exec, 1
    v_mov_b32 v32, 1
    v_mov_b32 v33, 0
    buffer_atomic_add v32, v33, %s, 0 offen sc1
    s_mov_b64 exec, -1
    L_no_cnt:
    s_waitcnt lgkmcnt(0)
    ''' % srd(sDBG))
    for k in range(1, 8):
        a('v_add_f32 v24, v24, v%d' % (24 + k))
    a('v_cvt_pk_bf16_f32 v24, v24, v24')
    a('v_lshlrev_b32 v40, 1, v0')
    a('ds_write_b16 v40, v24 offset:%d' % QB)
    a('s_waitcnt lgkmcnt(0)')
    a.label('L_q_skip')
    a('s_barrier')
    a('v_lshlrev_b32 v40, 4, v3')
    a('ds_read_b128 v[24:27], v40 offset:%d' % QB)
    a('s_cmp_eq_u32 s11, 1'); a('s_cbranch_scc0 L_wd1')
    weight_dma('A')
    a.label('L_wd1')
    if not cfg.bw_late:
        a('s_cmp_eq_u32 s11, 0'); a('s_cbranch_scc0 L_wd2')
        weight_dma('B')
        a.label('L_wd2')
    a.fence(4)
    a('s_waitcnt lgkmcnt(0)')
    for r in range(4):
        a('v_mov_b32 v%d, v%d' % (Q + r, 24 + r))
    for e in range(8):
        a('v_mov_b32 v%d, 0' % (ACC + e))
    a('v_mov_b32 v%d, 0xff800000' % M)
    a('v_mov_b32 v%d, 0' % L)
    a('v_mov_b32 v%d, 0' % CNT)
    a('s_mov_b32 s88, %s' % f32(LOG2E))
    a('s_mov_b32 s89, %s' % f32(SCALE))
    a('s_mov_b32 s90, 0')
    stamp(1)

    a.label('L_loop')
    W = 8 * D - 4
    for s in range(D):
        k0, v0_ = Kr(s), Vr(s)
        S = T
        a('s_waitcnt vmcnt(%d)' % W)
        for e in range(4):
            for c in range(4):
                if e == 0:
                    a('v_dot2_f32_bf16 v%d, v%d, v%d, 0' % (S + c, k0 + 4 * c, Q))
                else:
                    a('v_dot2c_f32_bf16 v%d, v%d, v%d' % (S + c, k0 + 4 * c + e, Q + e))
        load_tile(s, 'K')
        for r in (8, 4, 2, 1):
            for c in range(4):
                a('v_add_f32_dpp v%d, v%d, v%d row_ror:%d row_mask:0xf bank_mask:0xf' % (S + c, S + c, S + c, r))
        a('v_cvt_pk_bf16_f32 v28, v24, v25'); a('v_cvt_pk_bf16_f32 v29, v26, v27')
        a('v_lshlrev_b32 v24, 16, v28'); a('v_and_b32 v25, 0xffff0000, v28')
        a('v_lshlrev_b32 v26, 16, v29'); a('v_and_b32 v27, 0xffff0000, v29')
        for c in range(4):
            a('v_mul_f32 v%d, s89, v%d' % (S + c, S + c))
        a('v_cvt_pk_bf16_f32 v28, v24, v25'); a('v_cvt_pk_bf16_f32 v29, v26, v27')
        a('v_lshlrev_b32 v24, 16, v28'); a('v_and_b32 v25, 0xffff0000, v28')
        a('v_lshlrev_b32 v26, 16, v29'); a('v_and_b32 v27, 0xffff0000, v29')
        a('v_max3_f32 v30, v24, v25, v%d' % M)
        a('v_max3_f32 v30, v26, v27, v30')
        a('v_sub_f32 v31, v%d, v30' % M)
        for c in range(4):
            a('v_sub_f32 v%d, v%d, v30' % (S + c, S + c))
        a('v_mul_f32 v31, s88, v31')
        for c in range(4):
            a('v_mul_f32 v%d, s88, v%d' % (S + c, S + c))
        a('v_exp_f32 v31, v31')
        for c in range(4):
            a('v_exp_f32 v%d, v%d' % (S + c, S + c))
        a('v_mov_b32 v%d, v30' % M)
        for e in range(8):
            a('v_mul_f32 v%d, v%d, v31' % (ACC + e, ACC + e))
        a('v_fma_f32 v%d, v%d, v31, v24' % (L, L))
        a('v_add_f32 v30, v25, v26')
        a('v_add_f32 v%d, v%d, v27' % (L, L))
        for c in range(4):
            a('v_cvt_pk_bf16_f32 v%d, v%d, 0' % (32 + 2 * c, S + c))
            a('v_cvt_pk_bf16_f32 v%d, 0, v%d' % (33 + 2 * c, S + c))
        a('v_add_f32 v%d, v%d, v30' % (L, L))
        a('s_waitcnt vmcnt(%d)' % W)
        for c in range(4):
            for e in range(4):
                a('v_dot2c_f32_bf16 v%d, v%d, v%d' % (ACC + 2 * e, v0_ + 4 * c + e, 32 + 2 * c))
                a('v_dot2c_f32_bf16 v%d, v%d, v%d' % (ACC + 2 * e + 1, v0_ + 4 * c + e, 33 + 2 * c))
        load_tile(s, 'V')
        a('s_add_u32 s9, s9, %d' % tile_stride)
    a('s_add_u32 s90, s90, %d' % D)
    a('s_cmp_eq_u32 s90, %d' % (8 // D * D)); a('s_cbranch_scc0 L_nocnt2')
    a('v_mov_b32 v40, 0')
    a('buffer_load_dword v%d, v40, %s, 0 offen sc1' % (CNT, srd(sDBG)))
    a.label('L_nocnt2')
    a('s_cmp_lt_u32 s90, 16'); a('s_cbranch_scc1 L_loop')
    stamp(2)

    a.fence(4)
    a('v_mov_b32 v24, v%d' % M); a('v_mov_b32 v25, v%d' % M)
    a('v_permlane16_swap_b32 v24, v25'); a('v_max_f32 v24, v24, v25')
    a('v_mov_b32 v25, v24'); a('v_permlane32_swap_b32 v24, v25'); a('v_max_f32 v24, v24, v25')
    a('v_sub_f32 v26, v%d, v24' % M); a('v_mul_f32 v26, s88, v26'); a('v_exp_f32 v26, v26')
    for e in range(8):
        a('v_mul_f32 v%d, v%d, v26' % (ACC + e, ACC + e))
    a('v_mul_f32 v25, v%d, v26' % L)
    for e in range(4):
        a('v_permlane32_swap_b32 v%d, v%d' % (ACC + e, ACC + e + 4))
    a('v_mov_b32 v27, v25'); a('v_permlane16_swap_b32 v25, v27')
    for e in range(4):
        a('v_add_f32 v%d, v%d, v%d' % (ACC + e, ACC + e, ACC + e + 4))
    a('v_add_f32 v25, v25, v27')
    for e in range(2):
        a('v_permlane16_swap_b32 v%d, v%d' % (ACC + e, ACC + e + 2))
    a('v_mov_b32 v27, v25'); a('v_permlane32_swap_b32 v25, v27')
    for e in range(2):
        a('v_add_f32 v%d, v%d, v%d' % (ACC + e, ACC + e, ACC + e + 2))
    a('v_add_f32 v25, v25, v27')
    a('''
    v_lshlrev_b32 v40, 5, v3
    v_lshl_add_u32 v40, v2, 3, v40
    s_lshl_b32 s10, s3, 9
    v_add_u32 v40, s10, v40
    ds_write_b64 v40, v[%d:%d] offset:%d
    s_lshl_b32 s10, s3, 3
    v_mov_b32 v41, s10
    s_mov_b64 exec, 1
    ds_write_b64 v41, v[24:25] offset:%d
    s_mov_b64 exec, -1
    s_waitcnt vmcnt(0) lgkmcnt(0)
    s_barrier
    ''' % (ACC, ACC + 1, WC, WML))
    a('s_cmp_lt_u32 s3, 6'); a('s_cbranch_scc1 L_comb_skip')
    a('v_subrev_u32 v40, 384, v0'); a('v_lshlrev_b32 v40, 2, v40'); a('v_mov_b32 v41, 0')
    for k in range(4):
        a('ds_read_b128 %s, v41 offset:%d' % (vr(24 + 4 * k, 4), WML + 16 * k))
    for k in range(8):
        a('ds_read_b32 v%d, v40 offset:%d' % (ACC + k, WC + 512 * k))
    a('s_waitcnt lgkmcnt(8)')
    a('v_max3_f32 v42, v24, v26, v28'); a('v_max3_f32 v42, v30, v32, v42'); a('v_max3_f32 v42, v34, v36, v42'); a('v_max_f32 v42, v38, v42')
    for k in range(8):
        a('v_sub_f32 v%d, v%d, v42' % (24 + 2 * k, 24 + 2 * k))
    for k in range(8):
        a('v_mul_f32 v%d, s88, v%d' % (24 + 2 * k, 24 + 2 * k))
    for k in range(8):
        a('v_exp_f32 v%d, v%d' % (24 + 2 * k, 24 + 2 * k))
    a('s_waitcnt lgkmcnt(0)')
    a('v_mul_f32 v43, v24, v25'); a('v_mul_f32 v44, v24, v%d' % ACC)
    for k in range(1, 8):
        a('v_fmac_f32 v43, v%d, v%d' % (24 + 2 * k, 25 + 2 * k))
        a('v_fmac_f32 v44, v%d, v%d' % (24 + 2 * k, ACC + k))
    a('''
    v_min_u32 v42, 0xfffffffe, v42
    v_min_u32 v43, 0xfffffffe, v43
    v_min_u32 v44, 0xfffffffe, v44
    s_lshl_b32 s10, s14, 9
    buffer_store_dword v44, v40, %s, s10 offen sc1
    s_cmp_eq_u32 s3, 6
    s_cbranch_scc0 L_comb_skip
    s_lshl_b32 s10, s14, 4
    s_add_u32 s10, s10, %d
    s_mov_b64 exec, 1
    buffer_store_dwordx2 v[42:43], v41, %s, s10 offen sc1
    s_mov_b64 exec, -1
    L_comb_skip:
    ''' % (srd(sWS), ML, srd(sWS)))
    stamp(3)
    if cfg.bw_late:
        lbl_sfx[0] = 'l'
        a('s_cmp_eq_u32 s11, 0'); a('s_cbranch_scc0 L_wd3')
        weight_dma('B')
        a('s_waitcnt vmcnt(0)'); a('s_barrier')
        a.label('L_wd3')
    a('''
    s_mov_b32 s91, 0
    v_mov_b32 v40, 0
    L_cnt_chk:
    v_readfirstlane_b32 s10, v%d
    s_cmp_eq_u32 s10, 256
    s_cbranch_scc1 L_cnt_ok
    s_add_u32 s91, s91, 1
    s_cmp_gt_u32 s91, %d
    s_cbranch_scc1 L_END
    buffer_load_dword v%d, v40, %s, 0 offen sc1
    s_waitcnt vmcnt(0)
    s_branch L_cnt_chk
    L_cnt_ok:
    ''' % (CNT, cfg.spin_max, CNT, srd(sDBG)))
    a('''
    v_bfe_u32 v45, v1, 2, 2
    v_and_b32 v46, 3, v1
    s_cmp_eq_u32 s11, 0
    s_cbranch_scc1 L_roleB
    s_cmp_eq_u32 s11, 1
    s_cbranch_scc1 L_roleA
    s_cmp_eq_u32 s11, 2
    s_cbranch_scc1 L_roleC
    s_branch L_FIN
    ''')
    def p128_addr(dst, ct_sreg, base):
        a('''
        v_lshl_add_u32 v%(d)d, v2, 3, v45
        v_lshlrev_b32 v%(d)d, 7, v%(d)d
        v_lshrrev_b32 v42, 1, v45
        v_and_b32 v43, 1, v2
        v_lshl_add_u32 v42, v43, 1, v42
        v_xor_b32 v42, s%(ct)d, v42
        v_lshl_add_u32 v%(d)d, v42, 5, v%(d)d
        v_lshl_add_u32 v%(d)d, v46, 3, v%(d)d
        v_add_u32 v%(d)d, %(base)d, v%(d)d
        ''' % dict(d=dst, ct=ct_sreg, base=base))
    def spin_guard(lbl):
        a('s_add_u32 s91, s91, 1'); a('s_cmp_gt_u32 s91, %d' % cfg.spin_max); a('s_cbranch_scc1 L_END'); a('s_branch %s' % lbl)

    a.label('L_roleA'); a.fence(4)
    a('s_cmp_ge_u32 s3, 4'); a('s_cbranch_scc1 L_A_now')
    p128_addr(47, 3, WB)
    for ks in range(16):
        a('ds_read_b64_tr_b16 %s, v47 offset:%d' % (vr(48 + 4 * ks, 2), ks * 4096))
        a('ds_read_b64_tr_b16 %s, v47 offset:%d' % (vr(50 + 4 * ks, 2), ks * 4096 + 512))
    a.label('L_A_now')
    a('''
    s_lshl_b32 s10, s12, 2
    s_lshr_b32 s15, s3, 1
    s_add_u32 s10, s10, s15
    s_lshl_b32 s15, s10, 7
    s_add_u32 s15, s15, %d
    s_lshl_b32 s10, s10, 12
    s_and_b32 s84, s3, 1
    s_lshl_b32 s84, s84, 8
    s_add_u32 s10, s10, s84
    v_lshlrev_b32 v40, 2, v1
    v_and_b32 v41, 7, v1
    v_lshlrev_b32 v41, 4, v41
    L_A_poll:
    ''' % ML)
    a('buffer_load_dwordx2 v[32:33], v41, %s, s15 offen sc1' % srd(sWS))
    for k in range(8):
        a('buffer_load_dword v%d, v40, %s, s10 offen offset:%d sc1' % (24 + k, srd(sWS), 512 * k))
    a('''
    s_waitcnt vmcnt(0)
    v_max3_u32 v34, v24, v25, v26
    v_max3_u32 v35, v27, v28, v29
    v_max3_u32 v36, v30, v31, v32
    v_max3_u32 v34, v34, v35, v33
    v_max_u32 v34, v34, v36
    v_cmp_eq_u32 vcc, -1, v34
    s_cbranch_vccz L_A_got
    ''')
    spin_guard('L_A_poll')
    a.label('L_A_got')
    stamp(4)
    a('''
    v_max_f32_dpp v34, v32, v32 quad_perm:[1,0,3,2] row_mask:0xf bank_mask:0xf
    v_max_f32_dpp v34, v34, v34 quad_perm:[2,3,0,1] row_mask:0xf bank_mask:0xf
    v_max_f32_dpp v34, v34, v34 row_half_mirror row_mask:0xf bank_mask:0xf
    v_sub_f32 v35, v32, v34
    v_mul_f32 v35, s88, v35
    v_exp_f32 v35, v35
    v_mul_f32 v36, v35, v33
    v_add_f32_dpp v36, v36, v36 quad_perm:[1,0,3,2] row_mask:0xf bank_mask:0xf
    v_add_f32_dpp v36, v36, v36 quad_perm:[2,3,0,1] row_mask:0xf bank_mask:0xf
    v_add_f32_dpp v36, v36, v36 row_half_mirror row_mask:0xf bank_mask:0xf
    v_rcp_f32 v36, v36
    v_mul_f32 v35, v35, v36
    ''')
    sc = [4, 5, 6, 7, 8, 84, 85, 86]
    for k in range(8):
        a('v_readlane_b32 s%d, v35, %d' % (sc[k], k))
    a('v_mul_f32 v36, s%d, v24' % sc[0])
    for k in range(1, 8):
        a('v_fmac_f32 v36, s%d, v%d' % (sc[k], 24 + k))
    a('''
    v_cvt_pk_bf16_f32 v36, v36, v36
    v_lshlrev_b32 v40, 1, v0
    ds_write_b16 v40, v36 offset:%d
    s_waitcnt lgkmcnt(0)
    s_barrier
    s_cmp_ge_u32 s3, 4
    s_cbranch_scc1 L_FIN
    v_lshlrev_b32 v40, 4, v2
    ''' % OB)
    for ks in range(16):
        a('ds_read_b128 %s, v40 offset:%d' % (vr(112 + 4 * ks, 4), OB + 64 * ks))
    a('''
    s_mul_i32 s10, s12, 2304
    s_lshl_b32 s15, s13, 8
    s_add_u32 s10, s10, s15
    s_lshl_b32 s15, s3, 6
    s_add_u32 s10, s10, s15
    s_add_u32 s10, s10, %d
    ''' % YO)
    for ks in range(16):
        a('s_waitcnt lgkmcnt(%d)' % min(15, 15 - ks))
        a('v_mfma_f32_16x16x32_bf16 v[24:27], %s, %s, %s' % (vr(48 + 4 * ks, 4), vr(112 + 4 * ks, 4), '0' if ks == 0 else 'v[24:27]'))
    for r in range(4):
        a('v_min_u32 v%d, 0xfffffffe, v%d' % (24 + r, 24 + r))
    a('''
    s_mov_b32 exec_lo, 0x00010001
    s_mov_b32 exec_hi, 0x00010001
    buffer_store_dwordx4 v[24:27], v40, %s, s10 offen sc1
    s_mov_b64 exec, -1
    s_branch L_FIN
    ''' % srd(sWS))

    a.label('L_roleB'); a.fence(4)
    a('s_cmp_ge_u32 s3, 4'); a('s_cbranch_scc1 L_B_dn')
    a('''
    v_lshl_add_u32 v47, v2, 3, v45
    v_lshlrev_b32 v47, 6, v47
    v_lshrrev_b32 v42, 1, v46
    v_mul_u32_u24 v43, 36864, v42
    v_add_u32 v47, v47, v43
    v_and_b32 v43, 1, v2
    v_lshl_add_u32 v42, v42, 1, v43
    v_xor_b32 v42, s3, v42
    v_lshl_add_u32 v47, v42, 4, v47
    v_and_b32 v43, 1, v46
    v_lshl_add_u32 v47, v43, 3, v47
    v_add_u32 v47, %d, v47
    ''' % WB)
    for ks in range(18):
        a('ds_read_b64_tr_b16 %s, v47 offset:%d' % (vr(48 + 4 * ks, 2), ks * 2048))
        a('ds_read_b64_tr_b16 %s, v47 offset:%d' % (vr(50 + 4 * ks, 2), ks * 2048 + 256))
    a('s_branch L_B_now')
    a.label('L_B_dn')
    a('s_sub_u32 s10, s3, 4')
    p128_addr(47, 10, WB + 73728)
    for cb in range(9):
        a('ds_read_b64_tr_b16 %s, v47 offset:%d' % (vr(48 + 4 * cb, 2), cb * 4096))
        a('ds_read_b64_tr_b16 %s, v47 offset:%d' % (vr(50 + 4 * cb, 2), cb * 4096 + 512))
    a.label('L_B_now')
    a('''
    s_mul_i32 s10, s3, 144
    v_lshlrev_b32 v40, 2, v1
    v_add_u32 v40, s10, v40
    v_mov_b32 v42, %d
    v_cmp_gt_u32 s[84:85], 36, v1
    v_cndmask_b32 v40, v42, v40, s[84:85]
    buffer_load_dword v44, v40, %s, 0 offen
    v_lshlrev_b32 v41, 1, v40
    v_cndmask_b32 v41, v42, v41, s[84:85]
    s_mov_b32 s4, %d
    s_mov_b32 s5, %d
    s_mov_b32 s6, %d
    s_mov_b32 s7, %d
    L_B_poll:
    ''' % (OOB, srd(sX), YO, YO + 4608, YO + 9216, YO + 13824))
    for p in range(8):
        a('buffer_load_dwordx2 %s, v41, %s, s%d offen offset:%d sc1' % (vr(24 + 2 * p, 2), srd(sWS), 4 + p // 2, (p & 1) * 2304))
    a('s_waitcnt vmcnt(0)')
    a('v_max3_u32 v42, v24, v25, v26'); a('v_max3_u32 v43, v27, v28, v29')
    a('v_max3_u32 v42, v30, v31, v42'); a('v_max3_u32 v43, v32, v33, v43')
    a('v_max3_u32 v42, v34, v35, v42'); a('v_max3_u32 v43, v36, v37, v43')
    a('v_max3_u32 v42, v38, v39, v42'); a('v_max_u32 v42, v42, v43')
    a('v_cmp_eq_u32 vcc, -1, v42'); a('s_cbranch_vccz L_B_got')
    spin_guard('L_B_poll')
    a.label('L_B_got')
    stamp(4)
    for p in range(1, 8):
        a('v_add_f32 v24, v24, v%d' % (24 + 2 * p)); a('v_add_f32 v25, v25, v%d' % (25 + 2 * p))
    a('''
    v_cvt_pk_bf16_f32 v26, v24, v25
    v_lshlrev_b32 v24, 16, v26
    v_and_b32 v25, 0xffff0000, v26
    v_lshlrev_b32 v26, 16, v44
    v_and_b32 v27, 0xffff0000, v44
    v_add_f32 v24, v24, v26
    v_add_f32 v25, v25, v27
    v_cvt_pk_bf16_f32 v26, v24, v25
    v_lshlrev_b32 v24, 16, v26
    v_and_b32 v25, 0xffff0000, v26
    v_add_f32 v28, v24, v25
    ''')
    allreduce(28, 30)
    a('''
    v_mul_f32 v30, %s, v28
    v_sub_f32 v31, v24, v30
    v_sub_f32 v32, v25, v30
    v_mul_f32 v29, v31, v31
    v_fmac_f32 v29, v32, v32
    v_cndmask_b32 v29, 0, v29, s[84:85]
    ''' % f32(1.0 / 72))
    allreduce(29, 30)
    a('''
    s_lshl_b32 s10, s3, 3
    v_mov_b32 v42, s10
    s_mov_b64 exec, 1
    ds_write_b64 v42, v[28:29] offset:%d
    s_mov_b64 exec, -1
    v_mov_b32 v42, 0
    s_waitcnt lgkmcnt(0)
    s_barrier
    ''' % ST)
    for k in range(4):
        a('ds_read_b128 %s, v42 offset:%d' % (vr(28 + 4 * k, 4), ST + 16 * k))
    a('s_waitcnt lgkmcnt(0)')
    a('v_add_f32 v26, v28, v30'); a('v_add_f32 v27, v29, v31')
    for k in range(2, 8):
        a('v_add_f32 v26, v26, v%d' % (28 + 2 * k)); a('v_add_f32 v27, v27, v%d' % (29 + 2 * k))
    a('v_mul_f32 v26, %s, v26' % f32(1.0 / 576))
    a('s_mov_b32 s10, %s' % f32(1.0 / 72))
    for k in range(8):
        a('v_fma_f32 v%d, v%d, s10, -v26' % (28 + 2 * k, 28 + 2 * k))
    a('v_mul_f32 v29, v28, v28')
    for k in range(1, 8):
        a('v_fmac_f32 v29, v%d, v%d' % (28 + 2 * k, 28 + 2 * k))
    a('v_fmac_f32 v27, %s, v29' % f32(72.0))
    a('v_mul_f32 v27, %s, v27' % f32(1.0 / 576))
    ln_finish(26, 27, 28, 29, 30, 31)
    a('''
    v_sub_f32 v32, v24, v28
    v_sub_f32 v33, v25, v28
    v_cvt_pk_bf16_f32 v34, v32, v33
    v_lshlrev_b32 v32, 16, v34
    v_and_b32 v33, 0xffff0000, v34
    v_mul_f32 v34, v32, v30
    v_mul_f32 v35, v33, v30
    v_fma_f32 v32, -v34, v29, v32
    v_fma_f32 v33, -v35, v29, v33
    v_fmac_f32 v34, v32, v30
    v_fmac_f32 v35, v33, v30
    v_cvt_pk_bf16_f32 v34, v34, v35
    s_mul_i32 s10, s3, 144
    v_lshlrev_b32 v40, 2, v1
    v_add_u32 v40, s10, v40
    s_mov_b64 exec, s[84:85]
    ds_write_b32 v40, v34 offset:%d
    s_mov_b64 exec, -1
    v_lshlrev_b32 v40, 4, v2
    s_waitcnt lgkmcnt(0)
    s_barrier
    s_cmp_ge_u32 s3, 4
    s_cbranch_scc1 L_B_dn2
    ''' % OB)
    for ks in range(18):
        a('ds_read_b128 %s, v40 offset:%d' % (vr(120 + 4 * ks, 4), OB + 64 * ks))
    for ks in range(18):
        a('s_waitcnt lgkmcnt(%d)' % min(15, 17 - ks))
        a('v_mfma_f32_16x16x32_bf16 v[24:27], %s, %s, %s' % (vr(48 + 4 * ks, 4), vr(120 + 4 * ks, 4), '0' if ks == 0 else 'v[24:27]'))
    KB = 0.7978845608028654; KK = 0.044715
    a('''
    v_cmp_eq_u32 vcc, 1, v46
    v_cmp_eq_u32 s[4:5], 2, v46
    v_cmp_eq_u32 s[6:7], 3, v46
    v_cndmask_b32 v28, v24, v25, vcc
    v_cndmask_b32 v28, v28, v26, s[4:5]
    v_cndmask_b32 v28, v28, v27, s[6:7]
    v_mov_b32 v29, v28
    v_permlane32_swap_b32 v28, v29
    v_cvt_pk_bf16_f32 v30, v28, v29
    v_lshlrev_b32 v28, 16, v30
    v_and_b32 v29, 0xffff0000, v30
    v_mul_f32 v30, v28, v28
    v_mul_f32 v30, v30, v28
    v_mov_b32 v31, v28
    v_fmac_f32 v31, %s, v30
    v_mul_f32 v31, %s, v31
    v_exp_f32 v31, v31
    v_add_f32 v31, 1.0, v31
    v_rcp_f32 v31, v31
    v_mul_f32 v31, v28, v31
    v_cvt_pk_bf16_f32 v31, v31, v31
    v_lshlrev_b32 v31, 16, v31
    v_mul_f32 v31, v31, v29
    v_cvt_pk_bf16_f32 v31, v31, v31
    v_and_b32 v32, 1, v2
    v_lshl_add_u32 v32, v32, 2, v46
    v_lshlrev_b32 v32, 1, v32
    s_lshl_b32 s10, s3, 4
    v_add_u32 v32, s10, v32
    ds_write_b16 v32, v31 offset:%d
    s_waitcnt lgkmcnt(0)
    s_barrier
    s_branch L_FIN
    L_B_dn2:
    s_sub_u32 s10, s3, 4
    s_mul_i32 s10, s10, 9216
    s_lshl_b32 s15, s12, 6
    s_add_u32 s10, s10, s15
    s_add_u32 s10, s10, %d
    s_barrier
    ds_read_b128 v[24:27], v40 offset:%d
    s_waitcnt lgkmcnt(0)
    ''' % (f32(KK), f32(-2.0 * KB * LOG2E), HH, OUTP, HH))
    for cb in range(9):
        a('v_mfma_f32_16x16x32_bf16 %s, %s, v[24:27], 0' % (vr(84 + 4 * cb, 4), vr(48 + 4 * cb, 4)))
    a('s_mov_b32 exec_lo, 0x00010001'); a('s_mov_b32 exec_hi, 0x00010001')
    for cb in range(9):
        for r in range(4):
            a('v_min_u32 v%d, 0xfffffffe, v%d' % (84 + 4 * cb + r, 84 + 4 * cb + r))
        a('buffer_store_dwordx4 %s, v40, %s, s10 offen sc1' % (vr(84 + 4 * cb, 4), srd(sWS)))
        if cb < 8: a('s_add_u32 s10, s10, 36864')
    a('s_mov_b64 exec, -1')
    a('s_branch L_FIN')

    a.label('L_roleC'); a.fence(4)
    a('''
    s_cmp_ge_u32 s3, 4
    s_cbranch_scc1 L_FIN
    s_lshl_b32 s10, s12, 4
    s_lshl_b32 s15, s3, 2
    s_add_u32 s10, s10, s15
    v_add_u32 v40, s10, v2
    v_lshlrev_b32 v44, 1, v40
    buffer_load_ushort v43, v44, %s, 0 offen
    v_lshlrev_b32 v40, 2, v40
    v_mul_u32_u24 v41, 2304, v3
    v_add_u32 v40, v40, v41
    v_mov_b32 v42, %d
    v_cmp_gt_u32 vcc, 8, v3
    v_cndmask_b32 v40, v42, v40, vcc
    s_mov_b32 s4, %d
    L_C_poll1:
    buffer_load_dword v24, v40, %s, s4 offen sc1
    s_waitcnt vmcnt(0)
    v_cmp_eq_u32 vcc, -1, v24
    s_cbranch_vccz L_C_got1
    ''' % (srd(sX), OOB, YO, srd(sWS)))
    spin_guard('L_C_poll1')
    a.label('L_C_got1')
    for r in (8, 4, 2, 1):
        a('v_add_f32_dpp v24, v24, v24 row_ror:%d row_mask:0xf bank_mask:0xf' % r)
    a('''
    v_cvt_pk_bf16_f32 v24, v24, v24
    v_lshlrev_b32 v24, 16, v24
    v_lshlrev_b32 v43, 16, v43
    v_add_f32 v43, v43, v24
    v_cvt_pk_bf16_f32 v43, v43, v43
    v_lshlrev_b32 v43, 16, v43
    s_mul_i32 s4, s12, 9216
    s_lshl_b32 s15, s3, 4
    s_add_u32 s4, s4, s15
    s_add_u32 s4, s4, %d
    s_add_u32 s5, s4, 4096
    s_add_u32 s6, s4, 8192
    v_lshlrev_b32 v40, 6, v1
    v_cmp_gt_u32 vcc, 16, v1
    v_cndmask_b32 v41, v42, v40, vcc
    L_C_poll2:
    buffer_load_dwordx4 v[24:27], v40, %s, s4 offen sc1
    buffer_load_dwordx4 v[28:31], v40, %s, s5 offen sc1
    buffer_load_dwordx4 v[32:35], v41, %s, s6 offen sc1
    s_waitcnt vmcnt(0)
    v_max3_u32 v36, v24, v25, v26
    v_max3_u32 v37, v27, v28, v29
    v_max3_u32 v36, v30, v31, v36
    v_max3_u32 v37, v32, v33, v37
    v_max3_u32 v36, v34, v35, v36
    v_max_u32 v36, v36, v37
    v_cmp_eq_u32 vcc, -1, v36
    s_cbranch_vccz L_C_got2
    ''' % (OUTP, srd(sWS), srd(sWS), srd(sWS)))
    spin_guard('L_C_poll2')
    a.label('L_C_got2')
    stamp(4)
    for r in range(4):
        a('v_add_f32 v%d, v%d, v%d' % (24 + r, 24 + r, 28 + r))
    for r in range(4):
        a('v_add_f32 v%d, v%d, v%d' % (24 + r, 24 + r, 32 + r))
    a('''
    v_permlane32_swap_b32 v24, v26
    v_permlane32_swap_b32 v25, v27
    v_add_f32 v24, v24, v26
    v_add_f32 v25, v25, v27
    v_permlane16_swap_b32 v24, v25
    v_add_f32 v24, v24, v25
    ''')
    for r in (8, 4, 2, 1):
        a('v_add_f32_dpp v24, v24, v24 row_ror:%d row_mask:0xf bank_mask:0xf' % r)
    a('''
    v_cvt_pk_bf16_f32 v24, v24, v24
    v_lshlrev_b32 v24, 16, v24
    v_add_f32 v24, v24, v43
    v_cvt_pk_bf16_f32 v24, v24, v24
    s_mov_b32 exec_lo, 0x00010001
    s_mov_b32 exec_hi, 0x00010001
    buffer_store_short v24, v44, %s, 0 offen
    s_mov_b64 exec, -1
    ''' % srd(sOUT))
    a.label('L_FIN')
    if cfg.stamps:
        a.fence(4)
        a('s_memrealtime s[4:5]')
        a('s_lshl_b32 s10, s2, 3'); a('s_add_u32 s10, s10, s3'); a('s_lshl_b32 s10, s10, 6'); a('s_add_u32 s10, s10, %d' % TS)
        a('s_waitcnt lgkmcnt(0)')
        for k in range(5):
            a('v_mov_b32 v%d, s%d' % (24 + k, 92 + 2 * k))
        a('v_mov_b32 v29, s4')
        a('s_getreg_b32 s4, hwreg(HW_REG_XCC_ID)'); a('v_mov_b32 v30, s4')
        a('s_getreg_b32 s4, hwreg(HW_REG_HW_ID)'); a('v_mov_b32 v31, s4')
        a('v_mov_b32 v40, 0'); a('s_mov_b64 exec, 1')
        a('buffer_store_dwordx4 v[24:27], v40, %s, s10 offen' % srd(sWS))
        a('buffer_store_dwordx4 v[28:31], v40, %s, s10 offen offset:16' % srd(sWS))
    a.label('L_END')
    a('s_endpgm')
    a.raw('''.section .rodata,"a"
.p2align 6
.amdhsa_kernel %s
  .amdhsa_next_free_vgpr 224
  .amdhsa_next_free_sgpr 102
  .amdhsa_accum_offset 224
  .amdhsa_group_segment_fixed_size 0
  .amdhsa_kernarg_size 96
  .amdhsa_user_sgpr_count 2
  .amdhsa_user_sgpr_kernarg_segment_ptr 1
  .amdhsa_system_sgpr_workgroup_id_x 1
.end_amdhsa_kernel''' % KN)
    return a.text()

if __name__ == '__main__':
    out = sys.argv[1]
    kw = {}
    for arg in sys.argv[2:]:
        k, v = arg.split('=')
        kw[k] = eval(v)
    open(out, 'w').write(gen(Cfg(**kw)))
```

```python
import sys, struct
from asmlib import Asm

KN = 'sequential_preLN__mha_block_cached__glu_gated_geglu__decode_kernel'

def f32(x):
    return '0x%08x' % struct.unpack('<I', struct.pack('<f', x))[0]

class Cfg:
    nt = True
    stamps = False
    spin_max = 2000000
    S = 96
    wq_first = False
    prof = False
    pub_first = True
    force_b = 0
    early_b = True
    dry = False
    def __init__(self, **kw):
        for k, v in kw.items():
            assert hasattr(self, k), k
            setattr(self, k, v)

PART = 0
ML = 131072
YO = 135168
OUTP = 155648
TS = 524288
QX = 655360
EP = 786432
CT = 790528
WS_BYTES = 2 << 20
PROF = 1 << 20
OOB = 0x40000000
QB = 4096; WC = 0; WML = 4352; OB = 4608; ST = 5888; HH = 5952; CTR = 6080; WCTR = 6084; ARR = 6088; FLAG = 6092
WB = 6144
LDS_BYTES = WB + 110592
LOG2E = 1.4426950408889634
SCALE = 128 ** -0.5

class Asm2(Asm):
    nbar = 0
    dry = True
    def _emit(self, t):
        if t == 'BAR':
            if not self.dry:
                return Asm._emit(self, 's_barrier')
            self.nbar += 1
            Asm._emit(self, 's_cmp_lg_u32 s36, 0')
            Asm._emit(self, 's_cbranch_scc1 L_nb%d' % self.nbar)
            Asm._emit(self, 's_barrier')
            self.label('L_nb%d' % self.nbar)
            return
        Asm._emit(self, t)

def gen(cfg):
    a = Asm2()
    a.dry = cfg.dry
    hdr = open('sequential_preLN__mha_block_cached__glu_gated_geglu__decode.s.ref').read().split('\n')
    for l in hdr:
        if l.startswith('; @launch'): break
        a.raw(l)
    a.raw('; @launch grid=(256,1,1) block=(512,1,1) lds=%d' % LDS_BYTES)
    a.raw('.amdgcn_target "amdgcn-amd-amdhsa--gfx950"\n.text\n.globl %s\n.p2align 8\n.type %s,@function' % (KN, KN))
    a.label(KN)
    NT = ' nt' if cfg.nt else ''
    LANE, G, I, L16 = 1, 2, 3, 4
    Q = 5
    VD0, VD1, VG0, ONE = 9, 10, 11, 12
    ACC = 14
    M, L, VTAG = 22, 23, 13
    T = 24
    KV = 48
    def Kr(s): return KV + 32 * s
    def Vr(s): return KV + 32 * s + 16
    WQR = 112
    XR = 184
    XS = 194
    XN = 204
    MK = 40
    sK, sV, sX, sWQ, sWO, sWG, sWU, sWS, sOUT, sDBG, sWD = 40, 44, 48, 52, 56, 60, 64, 68, 72, 76, 80
    sBASE, TAG, T0, sHAVE = 5, 37, 38, 39
    sWM, sNG, sN, sMASK, sRET, sC, sG, sC0, sCOFF, sNGI = 32, 33, 34, 35, 6, 7, 8, 78, 79, 36
    PT = 42
    POOL0 = 8 * cfg.S
    DUMMY = 200
    def mk_tag():
        a('''
        s_waitcnt lgkmcnt(0)
        s_and_b32 s77, s76, 0xff
        s_add_u32 s%(TAG)d, s77, 1
        s_cmp_eq_u32 s77, 0xff
        s_cselect_b32 s%(TAG)d, 1, s%(TAG)d
        v_mov_b32 v%(VTAG)d, s%(TAG)d
        ''' % dict(TAG=TAG, VTAG=VTAG))
    def tagw(v):
        a('v_and_or_b32 v%d, v%d, s%d, v%d' % (v, v, sMASK, VTAG))
    def chk(regs, accs, ref='v13'):
        for k, r in enumerate(regs):
            ac = accs[k % len(accs)]
            a('v_msad_u8 v%d, v%d, %s, %s' % (ac, r, ref, '0' if k < len(accs) else 'v%d' % ac))
        if len(accs) == 2: a('v_or_b32 v%d, v%d, v%d' % (accs[0], accs[0], accs[1]))
        if len(accs) == 3: a('v_or3_b32 v%d, v%d, v%d, v%d' % (accs[0], accs[0], accs[1], accs[2]))
        a('v_cmp_ne_u32 vcc, 0, v%d' % accs[0])
    def srd(s): return 's[%d:%d]' % (s, s + 3)
    def vr(b, n): return 'v[%d:%d]' % (b, b + n - 1)
    SP = [92, 94, 96, 98, 100, 16, 18, 20, 22, 24, 26, 28, 30]
    def stamp(k):
        if cfg.stamps:
            a('s_memrealtime s[%d:%d]' % (SP[k], SP[k] + 1))
    def allreduce(v, t, op='v_add_f32'):
        for r in (8, 4, 2, 1):
            a('%s_dpp v%d, v%d, v%d row_ror:%d row_mask:0xf bank_mask:0xf' % (op, v, v, v, r))
        a('v_mov_b32 v%d, v%d' % (t, v)); a('v_permlane16_swap_b32 v%d, v%d' % (v, t)); a('%s v%d, v%d, v%d' % (op, v, v, t))
        a('v_mov_b32 v%d, v%d' % (t, v)); a('v_permlane32_swap_b32 v%d, v%d' % (v, t)); a('%s v%d, v%d, v%d' % (op, v, v, t))
    def load_tile(s, which, so='s9'):
        base = Kr(s) if which == 'K' else Vr(s)
        for c in range(4):
            a('buffer_load_dwordx4 %s, v%d, %s, %s offen offset:%d%s' % (vr(base + 4 * c, 4), L16, srd(sK if which == 'K' else sV), so, c * 1024, NT))
    def mk_srd(s, lo, nbytes):
        a('s_mov_b32 s%d, s%d' % (s, lo)); a('s_mov_b32 s%d, s%d' % (s + 1, lo + 1))
        a('s_mov_b32 s%d, %d' % (s + 2, nbytes)); a('s_mov_b32 s%d, 0x20000' % (s + 3))
    def ln_finish(mean, var, mb, sd, rc, t):
        a('v_cvt_pk_bf16_f32 v%d, v%d, v%d' % (t, mean, var))
        a('v_lshlrev_b32 v%d, 16, v%d' % (mb, t))
        a('v_and_b32 v%d, 0xffff0000, v%d' % (t, t))
        a('v_add_f32 v%d, %s, v%d' % (t, f32(1e-5), t))
        a('v_cvt_pk_bf16_f32 v%d, v%d, v%d' % (t, t, t))
        a('v_lshlrev_b32 v%d, 16, v%d' % (t, t))
        a('v_sqrt_f32 v%d, v%d' % (t, t))
        a('v_cvt_pk_bf16_f32 v%d, v%d, v%d' % (t, t, t))
        a('v_lshlrev_b32 v%d, 16, v%d' % (sd, t))
        a('v_rcp_f32 v%d, v%d' % (rc, sd))
    def spin_guard(lbl):
        a('s_add_u32 s91, s91, 1'); a('s_cmp_gt_u32 s91, %d' % cfg.spin_max); a('s_cbranch_scc1 L_END'); a('s_branch %s' % lbl)

    a('''
    s_cmp_ge_u32 s2, 256
    s_cbranch_scc1 L_END
    s_load_dwordx16 s[16:31], s[0:1], 0
    s_load_dwordx8 s[32:39], s[0:1], 64
    ''')
    stamp(0)
    a('''
    v_add_u32 v0, 448, v0
    v_and_b32 v1, 63, v0
    v_and_b32 v0, 511, v0
    v_lshrrev_b32 v24, 6, v0
    v_lshlrev_b32 v4, 4, v1
    v_readfirstlane_b32 s3, v24
    v_mov_b32 v24, 29
    v_mov_b32 v25, 0
    v_mov_b32 v26, 0
    v_mov_b32 v27, 0
    ds_write_b128 v25, v[24:27] offset:%(CTR)d
    v_lshrrev_b32 v2, 4, v1
    v_and_b32 v3, 15, v1
    s_lshr_b32 s4, s2, 3
    s_and_b32 s15, s2, 7
    s_lshl_b32 s6, s4, 22
    s_mul_i32 s%(BASE)d, s15, %(S)d
    s_mov_b32 s42, 0x400000
    s_mov_b32 s43, 0x20000
    s_mov_b32 s46, 0x400000
    s_mov_b32 s47, 0x20000
    s_add_u32 s9, s3, s%(BASE)d
    s_lshl_b32 s9, s9, 12
    s_lshl_b32 s%(COFF)d, s4, 8
    s_add_u32 s%(COFF)d, s%(COFF)d, %(CT)d
    s_waitcnt lgkmcnt(0)
    s_load_dword s76, s[38:39], %(EP)d
    s_load_dword s%(C0)d, s[38:39], s%(COFF)d
    s_add_u32 s40, s18, s6
    s_addc_u32 s41, s19, 0
    s_add_u32 s44, s20, s6
    s_addc_u32 s45, s21, 0
    s_cmp_lt_u32 s3, 7
    s_cbranch_scc0 L_nofirst
    ''' % dict(CTR=CTR, BASE=sBASE, S=cfg.S, COFF=sCOFF, CT=CT, EP=EP, C0=sC0))
    seq = [(b, wh) for b in (1, 2, 3, 0) for wh in 'KV']
    if cfg.wq_first: a('s_barrier')
    for j in range(2):
        s, wh = seq[j]
        load_tile(s, wh)
        if wh == 'V': a('s_add_u32 s9, s9, %d' % (7 * 4096))
    a.label('L_nofirst')
    mk_srd(sX, 16, 1152)
    mk_srd(sWQ, 22, 576 * 4096 * 2)
    a('s_cmp_eq_u32 s3, 7'); a('s_cbranch_scc0 L_notq')
    a('s_setprio 3')
    a('v_lshlrev_b32 v24, 1, v1')
    for k in range(9):
        a('buffer_load_ushort v%d, v24, %s, 0 offen offset:%d' % (XS + k, srd(sX), k * 128))
    a('s_mul_i32 s10, s15, 144')
    a('v_mul_u32_u24 v25, 36, v2')
    a('buffer_load_dwordx4 %s, v25, %s, s10 offen' % (vr(XR, 4), srd(sX)))
    a('buffer_load_dwordx4 %s, v25, %s, s10 offen offset:16' % (vr(XR + 4, 4), srd(sX)))
    a('buffer_load_dword v%d, v25, %s, s10 offen offset:32' % (XR + 8, srd(sX)))
    a('''
    v_mul_u32_u24 v24, %d, v2
    v_lshl_add_u32 v24, v3, 4, v24
    s_mul_i32 s10, s15, %d
    s_lshl_b32 s15, s4, 8
    s_add_u32 s10, s10, s15
    ''' % (18 * 8192, 72 * 8192))
    for t in range(18):
        a('buffer_load_dwordx4 %s, v24, %s, s10 offen%s' % (vr(WQR + 4 * t, 4), srd(sWQ), NT))
        if t < 17: a('s_add_u32 s10, s10, 8192')
    if cfg.wq_first: a('s_barrier')
    a.label('L_notq')
    mk_srd(sWS, 38, WS_BYTES)
    mk_srd(sWO, 24, 4096 * 576 * 2)
    mk_srd(sWG, 28, 576 * 4608 * 2)
    mk_srd(sWU, 30, 576 * 4608 * 2)
    mk_srd(sWD, 32, 4608 * 576 * 2)
    mk_srd(sOUT, 34, 1152)
    a('''
    s_add_u32 s12, s2, s4
    s_and_b32 s12, s12, 7
    s_lshl_b32 s12, s12, 5
    s_add_u32 s12, s12, s4
    s_mov_b32 s11, 0
    s_mov_b32 s%(NG)d, 27
    s_mov_b32 s0, %(FB)d
    s_cmp_lt_u32 s12, 144
    s_cbranch_scc1 L_role_done
    s_mov_b32 s11, 1
    s_mov_b32 s%(NG)d, 16
    s_mov_b32 s0, 16
    s_sub_u32 s10, s12, 144
    s_and_b32 s12, s10, 7
    s_lshr_b32 s13, s10, 3
    s_cmp_lt_u32 s10, 72
    s_cbranch_scc1 L_role_done
    s_mov_b32 s11, 2
    s_mov_b32 s%(NG)d, 0
    s_mov_b32 s0, 0
    s_sub_u32 s12, s10, 72
    s_cmp_lt_u32 s12, 36
    s_cbranch_scc1 L_role_done
    s_mov_b32 s11, 3
    L_role_done:
    s_mov_b32 s14, s2
    s_mov_b32 s88, %(l2e)s
    s_mov_b32 s89, %(sc)s
    s_mov_b32 s91, 0
    s_mov_b32 s90, 0
    s_mov_b32 s%(HAVE)d, 0
    s_mov_b32 s%(G)d, 0
    s_mov_b32 s%(NGI)d, 0
    s_mov_b32 s%(MASK)d, 0xffffff00
    ''' % dict(NG=sNG, l2e=f32(LOG2E), sc=f32(SCALE), MASK=sMASK, HAVE=sHAVE, G=sG, NGI=sNGI, FB=cfg.force_b))
    mk_tag()
    a('''
    s_barrier
    s_cmp_eq_u32 s3, 7
    s_cbranch_scc0 L_pace
    ''')
    a.label('L_qwave')
    a('''
    v_and_b32 v24, 1, v1
    v_mov_b32 v25, 0xffff
    v_mov_b32 v26, 0xffff0000
    v_cmp_eq_u32 vcc, 1, v24
    v_cndmask_b32 v25, v25, v26, vcc
    v_bfe_u32 v24, v1, 1, 2
    ''')
    for r in range(4):
        a('v_cmp_eq_u32 vcc, %d, v24' % r)
        a('v_cndmask_b32 v%d, 0, v25, vcc' % (MK + r))
    a('s_waitcnt vmcnt(%d)' % (3 + 18))
    stamp(5)
    for k in range(9):
        a('v_lshlrev_b32 v%d, 16, v%d' % (XS + k, XS + k))
    a('v_add_f32 v24, v%d, v%d' % (XS, XS + 1))
    for k in range(2, 9):
        a('v_add_f32 v24, v24, v%d' % (XS + k))
    allreduce(24, 25)
    a('v_mul_f32 v24, %s, v24' % f32(1.0 / 576))
    a('v_sub_f32 v26, v%d, v24' % XS); a('v_mul_f32 v27, v26, v26')
    for k in range(1, 9):
        a('v_sub_f32 v26, v%d, v24' % (XS + k)); a('v_fmac_f32 v27, v26, v26')
    allreduce(27, 25)
    a('v_mul_f32 v27, %s, v27' % f32(1.0 / 576))
    ln_finish(24, 27, 28, 29, 30, 25)
    a('s_waitcnt vmcnt(%d)' % 18)
    for k in range(9):
        a('v_lshlrev_b32 v32, 16, v%d' % (XR + k))
        a('v_and_b32 v33, 0xffff0000, v%d' % (XR + k))
        a('v_sub_f32 v32, v32, v28'); a('v_sub_f32 v33, v33, v28')
        a('v_cvt_pk_bf16_f32 v34, v32, v33')
        a('v_lshlrev_b32 v32, 16, v34'); a('v_and_b32 v33, 0xffff0000, v34')
        a('v_mul_f32 v34, v32, v30'); a('v_mul_f32 v35, v33, v30')
        a('v_fma_f32 v32, -v34, v29, v32'); a('v_fma_f32 v33, -v35, v29, v33')
        a('v_fmac_f32 v34, v32, v30'); a('v_fmac_f32 v35, v33, v30')
        a('v_cvt_pk_bf16_f32 v%d, v34, v34' % (XN + 2 * k)); a('v_cvt_pk_bf16_f32 v%d, v35, v35' % (XN + 2 * k + 1))
    a('''
    v_lshl_add_u32 v44, v2, 3, v3
    v_lshlrev_b32 v44, 4, v44
    v_mov_b32 v45, %d
    v_cmp_gt_u32 vcc, 8, v3
    v_cndmask_b32 v44, v45, v44, vcc
    s_lshl_b32 s10, s14, 9
    s_add_u32 s10, s10, %d
    ''' % (OOB, QX))
    stamp(6)
    a('s_waitcnt vmcnt(0)')
    stamp(7)
    for t in range(18):
        b = 32 + 4 * (t & 1)
        for r in range(4):
            a('v_and_b32 v%d, v%d, v%d' % (b + r, XN + t, MK + r))
        a('v_mfma_f32_16x16x32_bf16 v[24:27], %s, %s, %s' % (vr(WQR + 4 * t, 4), vr(b, 4), '0' if t == 0 else 'v[24:27]'))
    for r in range(4): tagw(24 + r)
    a('''
    buffer_store_dwordx4 v[24:27], v44, %(WS)s, s10 offen sc1
    s_lshl_b32 s10, s4, 12
    s_add_u32 s10, s10, %(QX)d
    ''' % dict(WS=srd(sWS), QX=QX))
    stamp(8)
    a('''
    v_bfe_u32 v44, v1, 3, 2
    v_and_b32 v45, 7, v1
    v_lshl_add_u32 v44, v44, 5, v45
    v_lshlrev_b32 v44, 1, v44
    v_mov_b32 v45, 0
    v_mov_b32 v46, 1
    L_q_poll:
    ''')
    for k in range(4):
        a('buffer_load_dwordx4 %s, v4, %s, s10 offen offset:%d sc1' % (vr(24 + 4 * k, 4), srd(sWS), 1024 * k))
    a('s_waitcnt vmcnt(0)')
    chk(range(24, 40), [40, 41, 42])
    a('s_cbranch_vccz L_q_got')
    spin_guard('L_q_poll')
    a.label('L_q_got')
    stamp(9)
    for r in range(4):
        a('v_add_f32 v%d, v%d, v%d' % (24 + r, 24 + r, 28 + r)); a('v_add_f32 v%d, v%d, v%d' % (32 + r, 32 + r, 36 + r))
    for r in range(4):
        a('v_add_f32 v%d, v%d, v%d' % (24 + r, 24 + r, 32 + r))
    for r in range(4):
        a('v_mov_b32 v%d, v%d' % (28 + r, 24 + r))
    for r in range(4):
        a('v_permlane32_swap_b32 v%d, v%d' % (24 + r, 28 + r))
    for r in range(4):
        a('v_add_f32 v%d, v%d, v%d' % (24 + r, 24 + r, 28 + r))
    a('v_cvt_pk_bf16_f32 v24, v24, v25'); a('v_cvt_pk_bf16_f32 v26, v26, v27')
    a('''
    ds_write_b16 v44, v24 offset:%d
    ds_write_b16_d16_hi v44, v24 offset:%d
    ds_write_b16 v44, v26 offset:%d
    ds_write_b16_d16_hi v44, v26 offset:%d
    s_waitcnt lgkmcnt(0)
    ds_write_b32 v45, v46 offset:%d
    ''' % (QB, QB + 16, QB + 32, QB + 48, FLAG))
    stamp(10)
    a('s_setprio 0')
    a('s_add_u32 s%d, s%d, 28' % (T0, sBASE)); a('s_lshl_b32 s9, s%d, 12' % T0)
    load_tile(0, 'K'); load_tile(0, 'V')
    a('s_branch L_wait_q')

    a.label('L_pace')
    for j in range(2, 8):
        s, wh = seq[j]
        a('s_waitcnt vmcnt(4)')
        load_tile(s, wh)
        if wh == 'V' and j < 7: a('s_add_u32 s9, s9, %d' % (7 * 4096))
    a('s_mov_b32 s%d, 0' % T0)
    a('s_mov_b32 s90, 1')
    a.label('L_wait_q')
    a('''
    v_lshrrev_b32 v34, 3, v1
    v_mul_u32_u24 v34, 1152, v34
    v_and_b32 v35, 1, v2
    v_lshlrev_b32 v35, 1, v35
    v_and_b32 v32, 7, v1
    v_xor_b32 v32, v32, v35
    v_xor_b32 v33, 4, v32
    v_lshl_add_u32 v%(VD0)d, v32, 4, v34
    v_lshl_add_u32 v%(VD1)d, v33, 4, v34
    v_lshrrev_b32 v34, 2, v1
    v_mul_u32_u24 v34, 9216, v34
    v_lshrrev_b32 v35, 5, v1
    v_and_b32 v36, 3, v1
    v_xor_b32 v35, v35, v36
    v_lshl_add_u32 v%(VG0)d, v35, 4, v34
    v_mov_b32 v%(ONE)d, 1
    v_mov_b32 v40, 0
    v_lshlrev_b32 v41, 4, v3
    ''' % dict(VD0=VD0, VD1=VD1, VG0=VG0, ONE=ONE))
    for e in range(8):
        a('v_mov_b32 v%d, 0' % (ACC + e))
    a('v_mov_b32 v%d, 0xff800000' % M)
    a('v_mov_b32 v%d, 0' % L)
    a('''
    L_qw:
    ds_read_b32 v42, v40 offset:%(FLAG)d
    ds_read_b128 v[24:27], v41 offset:%(QB)d
    s_waitcnt lgkmcnt(0)
    v_readfirstlane_b32 s10, v42
    s_cmp_lt_u32 s%(G)d, s0
    s_cselect_b32 s10, 0, s10
    s_cmp_eq_u32 s10, 1
    s_cbranch_scc1 L_fl_got
    s_cmp_ge_u32 s%(G)d, s%(NG)d
    s_cbranch_scc1 L_qw_idle
    ''' % dict(FLAG=FLAG, QB=QB, G=sG, NG=sNG))
    if not cfg.early_b:
        a('s_cmp_ge_u32 s%d, s0' % sG); a('s_cbranch_scc1 L_qw_idle')
    a('''
    s_mov_b64 exec, 1
    s_waitcnt vmcnt(4)
    ds_add_rtn_u32 v42, v4, v%(ONE)d offset:%(WCTR)d
    s_mov_b64 exec, -1
    s_waitcnt lgkmcnt(0)
    v_readfirstlane_b32 s%(G)d, v42
    s_cmp_ge_u32 s%(G)d, s%(NG)d
    s_cbranch_scc1 L_qw
    s_add_u32 s%(NGI)d, s%(NGI)d, 1
    s_mov_b32 s%(RET)d, 0
    s_branch L_dma
    L_qw_idle:
    s_sleep 1
    ''' % dict(ONE=ONE, WCTR=WCTR, G=sG, NG=sNG, NGI=sNGI, RET=sRET))
    spin_guard('L_qw')
    a.label('L_fl_got')
    for r in range(4):
        a('v_mov_b32 v%d, v%d' % (Q + r, 24 + r))
    stamp(1)
    if cfg.prof: a('s_mov_b32 s77, 0'); a('v_mov_b32 v222, 0')
    a('''
    s_cmp_ge_u32 s%d, 2
    s_cbranch_scc1 L_landed
    s_waitcnt vmcnt(0)
    L_landed:
    s_cmp_eq_u32 s90, 0
    s_cbranch_scc1 L_loop
    s_mov_b64 exec, 1
    s_cmp_eq_u32 s90, 0
    s_branch L_loop_nw
    ''' % sNGI)

    S = T
    def qk(k0):
        for e in range(4):
            for c in range(4):
                if e == 0:
                    a('v_dot2_f32_bf16 v%d, v%d, v%d, 0' % (S + c, k0 + 4 * c, Q))
                else:
                    a('v_dot2c_f32_bf16 v%d, v%d, v%d' % (S + c, k0 + 4 * c + e, Q + e))
    def soft():
        for r in (8, 4, 2, 1):
            for c in range(4):
                a('v_add_f32_dpp v%d, v%d, v%d row_ror:%d row_mask:0xf bank_mask:0xf' % (S + c, S + c, S + c, r))
        a('v_cvt_pk_bf16_f32 v28, v24, v25'); a('v_cvt_pk_bf16_f32 v29, v26, v27')
        a('v_lshlrev_b32 v24, 16, v28'); a('v_and_b32 v25, 0xffff0000, v28')
        a('v_lshlrev_b32 v26, 16, v29'); a('v_and_b32 v27, 0xffff0000, v29')
        for c in range(4):
            a('v_mul_f32 v%d, s89, v%d' % (S + c, S + c))
        a('v_cvt_pk_bf16_f32 v28, v24, v25'); a('v_cvt_pk_bf16_f32 v29, v26, v27')
        a('v_lshlrev_b32 v24, 16, v28'); a('v_and_b32 v25, 0xffff0000, v28')
        a('v_lshlrev_b32 v26, 16, v29'); a('v_and_b32 v27, 0xffff0000, v29')
        a('v_max3_f32 v30, v24, v25, v%d' % M)
        a('v_max3_f32 v30, v26, v27, v30')
        a('v_sub_f32 v31, v%d, v30' % M)
        for c in range(4):
            a('v_sub_f32 v%d, v%d, v30' % (S + c, S + c))
        a('v_mul_f32 v31, s88, v31')
        for c in range(4):
            a('v_mul_f32 v%d, s88, v%d' % (S + c, S + c))
        a('v_exp_f32 v31, v31')
        for c in range(4):
            a('v_exp_f32 v%d, v%d' % (S + c, S + c))
        a('v_mov_b32 v%d, v30' % M)
        for e in range(8):
            a('v_mul_f32 v%d, v%d, v31' % (ACC + e, ACC + e))
        a('v_fma_f32 v%d, v%d, v31, v24' % (L, L))
        a('v_add_f32 v30, v25, v26')
        a('v_add_f32 v%d, v%d, v27' % (L, L))
        for c in range(4):
            a('v_cvt_pk_bf16_f32 v%d, v%d, 0' % (32 + 2 * c, S + c))
            a('v_cvt_pk_bf16_f32 v%d, 0, v%d' % (33 + 2 * c, S + c))
        a('v_add_f32 v%d, v%d, v30' % (L, L))
    def pv(v0_):
        for c in range(4):
            for e in range(4):
                a('v_dot2c_f32_bf16 v%d, v%d, v%d' % (ACC + 2 * e, v0_ + 4 * c + e, 32 + 2 * c))
                a('v_dot2c_f32_bf16 v%d, v%d, v%d' % (ACC + 2 * e + 1, v0_ + 4 * c + e, 33 + 2 * c))
        if cfg.prof:
            a('s_memrealtime s[0:1]'); a('s_waitcnt lgkmcnt(0)'); a('s_mov_b32 m0, s77'); a('v_writelane_b32 v222, s0, m0'); a('s_add_u32 s77, s77, 1')
    a.label('L_loop')
    a('''
    s_mov_b64 exec, 1
    s_bitcmp1_b32 s%(T)d, 11
    s_waitcnt vmcnt(4)
    L_loop_nw:
    ds_add_rtn_u32 v40, v4, v%(ONE)d offset:%(CTR)d
    v_readfirstlane_b32 s10, v%(PT)d
    s_mov_b64 exec, -1
    s_cbranch_scc1 L_skipK
    ''' % dict(T=T0, ONE=ONE, CTR=CTR, PT=PT))
    qk(Kr(0))
    a('''
    L_skipK:
    s_cmp_eq_u32 s90, 0
    s_cselect_b32 s%(WM)d, 2, 0
    s_waitcnt lgkmcnt(0)
    v_readfirstlane_b32 s%(C)d, v40
    s_add_u32 s%(N)d, s%(C)d, s%(BASE)d
    s_cmp_lt_u32 s%(C)d, %(S)d
    s_cbranch_scc1 L_st
    s_sub_u32 s10, s10, s%(C0)d
    s_add_u32 s%(N)d, s10, %(POOL0)d
    s_cmp_eq_u32 s%(HAVE)d, 0
    s_cselect_b32 s%(N)d, 2048, s%(N)d
    s_mov_b32 s%(HAVE)d, 1
    s_bitcmp1_b32 s%(N)d, 10
    s_cselect_b32 s%(WM)d, 2, 1
    L_st:
    s_lshl_b32 s9, s%(N)d, 12
    ''' % dict(WM=sWM, C=sC, N=sN, BASE=sBASE, S=cfg.S, C0=sC0, POOL0=POOL0, HAVE=sHAVE))
    load_tile(0, 'K')
    a('''
    s_cmp_eq_u32 s%(WM)d, 1
    s_cbranch_scc0 L_noat
    v_mov_b32 v%(PT)d, 1
    s_mov_b64 exec, 1
    buffer_atomic_add v%(PT)d, v4, %(WS)s, s%(COFF)d offen sc0 sc1
    s_mov_b64 exec, -1
    L_noat:
    s_bitcmp1_b32 s%(T)d, 11
    s_cbranch_scc1 L_skipV
    ''' % dict(WM=sWM, PT=PT, WS=srd(sWS), COFF=sCOFF, T=T0))
    soft()
    a('''
    s_cmp_eq_u32 s%(WM)d, 0
    s_cbranch_scc1 L_vw
    s_cmp_eq_u32 s%(WM)d, 1
    s_waitcnt vmcnt(5)
    s_cbranch_scc1 L_vw
    s_waitcnt vmcnt(4)
    L_vw:
    ''' % dict(WM=sWM))
    pv(Vr(0))
    a('''
    L_skipV:
    s_bitcmp1_b32 s%(N)d, 10
    s_cbranch_scc1 L_tail
    s_mov_b32 s%(T)d, s%(N)d
    ''' % dict(T=T0, N=sN))
    load_tile(0, 'V')
    a('s_cmp_eq_u32 s90, 0'); a('s_cbranch_scc1 L_loop')
    a('s_mov_b32 s90, 0')
    for s in range(1, 4):
        qk(Kr(s)); soft(); pv(Vr(s))
    a('s_branch L_loop')
    a('''
    L_dma:
    s_lshl_b32 s15, s%(G)d, 12
    s_add_u32 s15, s15, %(WB)d
    s_mov_b32 s87, 0x20000
    s_cmp_eq_u32 s11, 1
    s_cbranch_scc1 L_dg_A
    s_cmp_ge_u32 s%(G)d, 18
    s_cbranch_scc1 L_dg_D
    s_cmp_ge_u32 s%(G)d, 9
    s_cselect_b32 s84, s64, s60
    s_cselect_b32 s85, s65, s61
    s_cselect_b32 s10, 9, 0
    s_cselect_b32 s9, 32, 0
    s_mov_b32 s86, %(GUB)d
    v_xor_b32 v43, s9, v%(VG0)d
    s_sub_u32 s10, s%(G)d, s10
    s_mul_i32 s10, s10, 589824
    s_lshl_b32 s9, s12, 6
    s_add_u32 s10, s10, s9
    ''' % dict(N=sN, G=sG, WB=WB, GUB=576 * 4608 * 2, VG0=VG0))
    for k in range(4):
        a('s_mov_b32 m0, s15')
        a('buffer_load_dwordx4 v43, s[84:87], s10 offen%s lds' % NT)
        if k < 3: a('s_add_u32 s10, s10, 147456'); a('s_add_u32 s15, s15, 1024')
    a('''
    s_branch L_dg_next
    L_dg_A:
    s_mov_b32 s84, s56
    s_mov_b32 s85, s57
    s_mov_b32 s86, %(WOB)d
    s_lshl_b32 s10, s12, 4
    s_add_u32 s10, s10, s%(G)d
    s_mul_i32 s10, s10, 36864
    s_lshl_b32 s9, s13, 7
    s_add_u32 s10, s10, s9
    s_branch L_dg_P
    L_dg_D:
    s_mov_b32 s84, s80
    s_mov_b32 s85, s81
    s_mov_b32 s86, %(WDB)d
    s_mul_i32 s10, s12, 36864
    s_sub_u32 s9, s%(G)d, 18
    s_lshl_b32 s9, s9, 7
    s_add_u32 s10, s10, s9
    L_dg_P:
    ''' % dict(G=sG, WOB=4096 * 576 * 2, WDB=4608 * 576 * 2))
    for k in range(4):
        a('s_mov_b32 m0, s15')
        a('buffer_load_dwordx4 v%d, s[84:87], s10 offen%s lds' % ((VD0, VD1)[k & 1], NT))
        if k < 3: a('s_add_u32 s10, s10, 9216'); a('s_add_u32 s15, s15, 1024')
    a('''
    L_dg_next:
    s_cmp_eq_u32 s%(RET)d, 0
    s_cbranch_scc1 L_qw
    s_branch L_we2
    ''' % dict(RET=sRET))

    a.label('L_tail')
    stamp(2)
    a('s_mov_b32 s91, 0')

    a.fence(4)
    a('v_mov_b32 v24, v%d' % M); a('v_mov_b32 v25, v%d' % M)
    a('v_permlane16_swap_b32 v24, v25'); a('v_max_f32 v24, v24, v25')
    a('v_mov_b32 v25, v24'); a('v_permlane32_swap_b32 v24, v25'); a('v_max_f32 v24, v24, v25')
    a('v_sub_f32 v26, v%d, v24' % M); a('v_mul_f32 v26, s88, v26'); a('v_exp_f32 v26, v26')
    for e in range(8):
        a('v_mul_f32 v%d, v%d, v26' % (ACC + e, ACC + e))
    a('v_mul_f32 v25, v%d, v26' % L)
    for e in range(4):
        a('v_permlane32_swap_b32 v%d, v%d' % (ACC + e, ACC + e + 4))
    a('v_mov_b32 v27, v25'); a('v_permlane16_swap_b32 v25, v27')
    for e in range(4):
        a('v_add_f32 v%d, v%d, v%d' % (ACC + e, ACC + e, ACC + e + 4))
    a('v_add_f32 v25, v25, v27')
    for e in range(2):
        a('v_permlane16_swap_b32 v%d, v%d' % (ACC + e, ACC + e + 2))
    a('v_mov_b32 v27, v25'); a('v_permlane32_swap_b32 v25, v27')
    for e in range(2):
        a('v_add_f32 v%d, v%d, v%d' % (ACC + e, ACC + e, ACC + e + 2))
    a('v_add_f32 v25, v25, v27')
    a('''
    v_lshlrev_b32 v40, 5, v3
    v_lshl_add_u32 v40, v2, 3, v40
    s_lshl_b32 s10, s3, 9
    v_add_u32 v40, s10, v40
    ds_write_b64 v40, v[%d:%d] offset:%d
    s_lshl_b32 s10, s3, 3
    v_mov_b32 v41, s10
    s_mov_b64 exec, 1
    ds_write_b64 v41, v[24:25] offset:%d
    ds_add_rtn_u32 v41, v4, v%d offset:%d
    s_mov_b64 exec, -1
    v_lshlrev_b32 v40, 3, v1
    s_waitcnt lgkmcnt(0)
    v_readfirstlane_b32 s10, v41
    s_cmp_eq_u32 s10, 7
    s_cbranch_scc0 L_comb_skip
    v_mov_b32 v41, 0
    ''' % (ACC, ACC + 1, WC, WML, ONE, ARR))
    for k in range(4):
        a('ds_read_b128 %s, v41 offset:%d' % (vr(24 + 4 * k, 4), WML + 16 * k))
    for k in range(8):
        a('ds_read_b64 %s, v40 offset:%d' % (vr(176 + 2 * k, 2), WC + 512 * k))
    a('s_waitcnt lgkmcnt(8)')
    a('v_max3_f32 v42, v24, v26, v28'); a('v_max3_f32 v42, v30, v32, v42'); a('v_max3_f32 v42, v34, v36, v42'); a('v_max_f32 v42, v38, v42')
    for k in range(8):
        a('v_sub_f32 v%d, v%d, v42' % (24 + 2 * k, 24 + 2 * k))
    for k in range(8):
        a('v_mul_f32 v%d, s88, v%d' % (24 + 2 * k, 24 + 2 * k))
    for k in range(8):
        a('v_exp_f32 v%d, v%d' % (24 + 2 * k, 24 + 2 * k))
    a('s_waitcnt lgkmcnt(0)')
    a('v_mul_f32 v44, v24, v176'); a('v_mul_f32 v45, v24, v177'); a('v_mul_f32 v43, v24, v25')
    for k in range(1, 8):
        a('v_fmac_f32 v44, v%d, v%d' % (24 + 2 * k, 176 + 2 * k))
        a('v_fmac_f32 v45, v%d, v%d' % (24 + 2 * k, 177 + 2 * k))
        a('v_fmac_f32 v43, v%d, v%d' % (24 + 2 * k, 25 + 2 * k))
    tagw(44); tagw(45); tagw(42); tagw(43)
    a('''
    s_lshl_b32 s10, s14, 9
    buffer_store_dwordx2 v[44:45], v40, %s, s10 offen sc1
    s_lshl_b32 s10, s14, 4
    s_add_u32 s10, s10, %d
    s_mov_b64 exec, 1
    buffer_store_dwordx2 v[42:43], v41, %s, s10 offen sc1
    s_mov_b64 exec, -1
    L_comb_skip:
    ''' % (srd(sWS), ML, srd(sWS)))
    stamp(3)
    if cfg.pub_first: a('s_barrier')
    a('''
    s_mov_b32 s%(RET)d, 1
    L_we:
    s_cmp_ge_u32 s%(G)d, s%(NG)d
    s_cbranch_scc1 L_wdone
    s_mov_b64 exec, 1
    ds_add_rtn_u32 v42, v4, v%(ONE)d offset:%(WCTR)d
    s_mov_b64 exec, -1
    s_waitcnt lgkmcnt(0)
    v_readfirstlane_b32 s%(G)d, v42
    s_cmp_lt_u32 s%(G)d, s%(NG)d
    s_cbranch_scc1 L_dma
    s_branch L_wdone
    L_we2:
    s_waitcnt vmcnt(4)
    s_branch L_we
    L_wdone:
    ''' % dict(RET=sRET, G=sG, NG=sNG, ONE=ONE, WCTR=WCTR))
    a('s_waitcnt vmcnt(0)'); a('BAR')
    a('''
    v_bfe_u32 v45, v1, 2, 2
    v_and_b32 v46, 3, v1
    s_cmp_eq_u32 s11, 0
    s_cbranch_scc1 L_roleB
    s_cmp_eq_u32 s11, 1
    s_cbranch_scc1 L_roleA
    s_cmp_eq_u32 s11, 2
    s_cbranch_scc1 L_roleC
    s_branch L_FIN
    ''')
    def p128_addr(dst, ct_sreg, base):
        a('''
        v_lshl_add_u32 v%(d)d, v2, 3, v45
        v_lshlrev_b32 v%(d)d, 7, v%(d)d
        v_lshrrev_b32 v42, 1, v45
        v_and_b32 v43, 1, v2
        v_lshl_add_u32 v42, v43, 1, v42
        v_xor_b32 v42, s%(ct)d, v42
        v_lshl_add_u32 v%(d)d, v42, 5, v%(d)d
        v_lshl_add_u32 v%(d)d, v46, 3, v%(d)d
        v_add_u32 v%(d)d, %(base)d, v%(d)d
        ''' % dict(d=dst, ct=ct_sreg, base=base))
    a.label('L_roleA'); a.fence(4)
    a('s_cmp_ge_u32 s3, 4'); a('s_cbranch_scc1 L_A_now')
    p128_addr(47, 3, WB)
    for ks in range(16):
        a('ds_read_b64_tr_b16 %s, v47 offset:%d' % (vr(48 + 4 * ks, 2), ks * 4096))
        a('ds_read_b64_tr_b16 %s, v47 offset:%d' % (vr(50 + 4 * ks, 2), ks * 4096 + 512))
    a.label('L_A_now')
    a('''
    s_lshl_b32 s10, s12, 2
    s_lshr_b32 s15, s3, 1
    s_add_u32 s10, s10, s15
    s_lshl_b32 s15, s10, 7
    s_add_u32 s15, s15, %d
    s_lshl_b32 s10, s10, 12
    s_and_b32 s84, s3, 1
    s_lshl_b32 s84, s84, 8
    s_add_u32 s10, s10, s84
    v_lshlrev_b32 v40, 2, v1
    v_and_b32 v41, 7, v1
    v_lshlrev_b32 v41, 4, v41
    L_A_poll:
    ''' % ML)
    a('buffer_load_dwordx2 v[32:33], v41, %s, s15 offen sc1' % srd(sWS))
    for k in range(8):
        a('buffer_load_dword v%d, v40, %s, s10 offen offset:%d sc1' % (24 + k, srd(sWS), 512 * k))
    a('s_waitcnt vmcnt(0)')
    chk(range(24, 34), [34, 35, 36])
    a('s_cbranch_vccz L_A_got')
    spin_guard('L_A_poll')
    a.label('L_A_got')
    stamp(4)
    a('v_and_b32 v32, s%d, v32' % sMASK)
    a('''
    v_max_f32_dpp v34, v32, v32 quad_perm:[1,0,3,2] row_mask:0xf bank_mask:0xf
    v_max_f32_dpp v34, v34, v34 quad_perm:[2,3,0,1] row_mask:0xf bank_mask:0xf
    v_max_f32_dpp v34, v34, v34 row_half_mirror row_mask:0xf bank_mask:0xf
    v_sub_f32 v35, v32, v34
    v_mul_f32 v35, s88, v35
    v_exp_f32 v35, v35
    v_mul_f32 v36, v35, v33
    v_add_f32_dpp v36, v36, v36 quad_perm:[1,0,3,2] row_mask:0xf bank_mask:0xf
    v_add_f32_dpp v36, v36, v36 quad_perm:[2,3,0,1] row_mask:0xf bank_mask:0xf
    v_add_f32_dpp v36, v36, v36 row_half_mirror row_mask:0xf bank_mask:0xf
    v_rcp_f32 v36, v36
    v_mul_f32 v35, v35, v36
    ''')
    sc = [4, 5, 6, 7, 8, 84, 85, 86]
    for k in range(8):
        a('v_readlane_b32 s%d, v35, %d' % (sc[k], k))
    a('v_mul_f32 v36, s%d, v24' % sc[0])
    for k in range(1, 8):
        a('v_fmac_f32 v36, s%d, v%d' % (sc[k], 24 + k))
    a('''
    v_cvt_pk_bf16_f32 v36, v36, v36
    v_lshlrev_b32 v40, 1, v0
    ds_write_b16 v40, v36 offset:%d
    s_waitcnt lgkmcnt(0)
    BAR
    s_cmp_ge_u32 s3, 4
    s_cbranch_scc1 L_FIN
    v_lshlrev_b32 v40, 4, v2
    ''' % OB)
    for ks in range(16):
        a('ds_read_b128 %s, v40 offset:%d' % (vr(112 + 4 * ks, 4), OB + 64 * ks))
    a('''
    s_mul_i32 s10, s12, 2304
    s_lshl_b32 s15, s13, 8
    s_add_u32 s10, s10, s15
    s_lshl_b32 s15, s3, 6
    s_add_u32 s10, s10, s15
    s_add_u32 s10, s10, %d
    ''' % YO)
    for ks in range(16):
        a('s_waitcnt lgkmcnt(%d)' % min(15, 15 - ks))
        a('v_mfma_f32_16x16x32_bf16 v[24:27], %s, %s, %s' % (vr(48 + 4 * ks, 4), vr(112 + 4 * ks, 4), '0' if ks == 0 else 'v[24:27]'))
    for r in range(4): tagw(24 + r)
    a('''
    s_mov_b32 exec_lo, 0x00010001
    s_mov_b32 exec_hi, 0x00010001
    buffer_store_dwordx4 v[24:27], v40, %s, s10 offen sc1
    s_mov_b64 exec, -1
    s_branch L_FIN
    ''' % srd(sWS))

    a.label('L_roleB'); a.fence(4)
    a('s_cmp_ge_u32 s3, 4'); a('s_cbranch_scc1 L_B_dn')
    a('''
    v_lshl_add_u32 v47, v2, 3, v45
    v_lshlrev_b32 v47, 6, v47
    v_lshrrev_b32 v42, 1, v46
    v_mul_u32_u24 v43, 36864, v42
    v_add_u32 v47, v47, v43
    v_and_b32 v43, 1, v2
    v_lshl_add_u32 v42, v42, 1, v43
    v_xor_b32 v42, s3, v42
    v_lshl_add_u32 v47, v42, 4, v47
    v_and_b32 v43, 1, v46
    v_lshl_add_u32 v47, v43, 3, v47
    v_add_u32 v47, %d, v47
    ''' % WB)
    for ks in range(18):
        a('ds_read_b64_tr_b16 %s, v47 offset:%d' % (vr(48 + 4 * ks, 2), ks * 2048))
        a('ds_read_b64_tr_b16 %s, v47 offset:%d' % (vr(50 + 4 * ks, 2), ks * 2048 + 256))
    a('s_branch L_B_now')
    a.label('L_B_dn')
    a('s_sub_u32 s10, s3, 4')
    p128_addr(47, 10, WB + 73728)
    for cb in range(9):
        a('ds_read_b64_tr_b16 %s, v47 offset:%d' % (vr(48 + 4 * cb, 2), cb * 4096))
        a('ds_read_b64_tr_b16 %s, v47 offset:%d' % (vr(50 + 4 * cb, 2), cb * 4096 + 512))
    a.label('L_B_now')
    a('''
    s_mul_i32 s10, s3, 144
    v_lshlrev_b32 v40, 2, v1
    v_add_u32 v40, s10, v40
    v_mov_b32 v42, %d
    v_cmp_gt_u32 s[84:85], 36, v1
    v_cndmask_b32 v40, v42, v40, s[84:85]
    buffer_load_dword v44, v40, %s, 0 offen
    v_lshlrev_b32 v41, 1, v40
    v_cndmask_b32 v41, v42, v41, s[84:85]
    v_cndmask_b32 v47, 0, v13, s[84:85]
    s_mov_b32 s4, %d
    s_mov_b32 s5, %d
    s_mov_b32 s6, %d
    s_mov_b32 s7, %d
    L_B_poll:
    ''' % (OOB, srd(sX), YO, YO + 4608, YO + 9216, YO + 13824))
    for p in range(8):
        a('buffer_load_dwordx2 %s, v41, %s, s%d offen offset:%d sc1' % (vr(24 + 2 * p, 2), srd(sWS), 4 + p // 2, (p & 1) * 2304))
    a('s_waitcnt vmcnt(0)')
    chk(range(24, 40), [40, 42, 43], 'v47')
    a('s_cbranch_vccz L_B_got')
    spin_guard('L_B_poll')
    a.label('L_B_got')
    stamp(4)
    for p in range(1, 8):
        a('v_add_f32 v24, v24, v%d' % (24 + 2 * p)); a('v_add_f32 v25, v25, v%d' % (25 + 2 * p))
    a('''
    v_cvt_pk_bf16_f32 v26, v24, v25
    v_lshlrev_b32 v24, 16, v26
    v_and_b32 v25, 0xffff0000, v26
    v_lshlrev_b32 v26, 16, v44
    v_and_b32 v27, 0xffff0000, v44
    v_add_f32 v24, v24, v26
    v_add_f32 v25, v25, v27
    v_cvt_pk_bf16_f32 v26, v24, v25
    v_lshlrev_b32 v24, 16, v26
    v_and_b32 v25, 0xffff0000, v26
    v_add_f32 v28, v24, v25
    ''')
    allreduce(28, 30)
    a('''
    v_mul_f32 v30, %s, v28
    v_sub_f32 v31, v24, v30
    v_sub_f32 v32, v25, v30
    v_mul_f32 v29, v31, v31
    v_fmac_f32 v29, v32, v32
    v_cndmask_b32 v29, 0, v29, s[84:85]
    ''' % f32(1.0 / 72))
    allreduce(29, 30)
    a('''
    s_lshl_b32 s10, s3, 3
    v_mov_b32 v42, s10
    s_mov_b64 exec, 1
    ds_write_b64 v42, v[28:29] offset:%d
    s_mov_b64 exec, -1
    v_mov_b32 v42, 0
    s_waitcnt lgkmcnt(0)
    BAR
    ''' % ST)
    for k in range(4):
        a('ds_read_b128 %s, v42 offset:%d' % (vr(28 + 4 * k, 4), ST + 16 * k))
    a('s_waitcnt lgkmcnt(0)')
    a('v_add_f32 v26, v28, v30'); a('v_add_f32 v27, v29, v31')
    for k in range(2, 8):
        a('v_add_f32 v26, v26, v%d' % (28 + 2 * k)); a('v_add_f32 v27, v27, v%d' % (29 + 2 * k))
    a('v_mul_f32 v26, %s, v26' % f32(1.0 / 576))
    a('s_mov_b32 s10, %s' % f32(1.0 / 72))
    for k in range(8):
        a('v_fma_f32 v%d, v%d, s10, -v26' % (28 + 2 * k, 28 + 2 * k))
    a('v_mul_f32 v29, v28, v28')
    for k in range(1, 8):
        a('v_fmac_f32 v29, v%d, v%d' % (28 + 2 * k, 28 + 2 * k))
    a('v_fmac_f32 v27, %s, v29' % f32(72.0))
    a('v_mul_f32 v27, %s, v27' % f32(1.0 / 576))
    ln_finish(26, 27, 28, 29, 30, 31)
    a('''
    v_sub_f32 v32, v24, v28
    v_sub_f32 v33, v25, v28
    v_cvt_pk_bf16_f32 v34, v32, v33
    v_lshlrev_b32 v32, 16, v34
    v_and_b32 v33, 0xffff0000, v34
    v_mul_f32 v34, v32, v30
    v_mul_f32 v35, v33, v30
    v_fma_f32 v32, -v34, v29, v32
    v_fma_f32 v33, -v35, v29, v33
    v_fmac_f32 v34, v32, v30
    v_fmac_f32 v35, v33, v30
    v_cvt_pk_bf16_f32 v34, v34, v35
    s_mul_i32 s10, s3, 144
    v_lshlrev_b32 v40, 2, v1
    v_add_u32 v40, s10, v40
    s_mov_b64 exec, s[84:85]
    ds_write_b32 v40, v34 offset:%d
    s_mov_b64 exec, -1
    v_lshlrev_b32 v40, 4, v2
    s_waitcnt lgkmcnt(0)
    BAR
    s_cmp_ge_u32 s3, 4
    s_cbranch_scc1 L_B_dn2
    ''' % OB)
    for ks in range(18):
        a('ds_read_b128 %s, v40 offset:%d' % (vr(120 + 4 * ks, 4), OB + 64 * ks))
    for ks in range(18):
        a('s_waitcnt lgkmcnt(%d)' % min(15, 17 - ks))
        a('v_mfma_f32_16x16x32_bf16 v[24:27], %s, %s, %s' % (vr(48 + 4 * ks, 4), vr(120 + 4 * ks, 4), '0' if ks == 0 else 'v[24:27]'))
    KB = 0.7978845608028654; KK = 0.044715
    a('''
    v_cmp_eq_u32 vcc, 1, v46
    v_cmp_eq_u32 s[4:5], 2, v46
    v_cmp_eq_u32 s[6:7], 3, v46
    v_cndmask_b32 v28, v24, v25, vcc
    v_cndmask_b32 v28, v28, v26, s[4:5]
    v_cndmask_b32 v28, v28, v27, s[6:7]
    v_mov_b32 v29, v28
    v_permlane32_swap_b32 v28, v29
    v_cvt_pk_bf16_f32 v30, v28, v29
    v_lshlrev_b32 v28, 16, v30
    v_and_b32 v29, 0xffff0000, v30
    v_mul_f32 v30, v28, v28
    v_mul_f32 v30, v30, v28
    v_mov_b32 v31, v28
    v_fmac_f32 v31, %s, v30
    v_mul_f32 v31, %s, v31
    v_exp_f32 v31, v31
    v_add_f32 v31, 1.0, v31
    v_rcp_f32 v31, v31
    v_mul_f32 v31, v28, v31
    v_cvt_pk_bf16_f32 v31, v31, v31
    v_lshlrev_b32 v31, 16, v31
    v_mul_f32 v31, v31, v29
    v_cvt_pk_bf16_f32 v31, v31, v31
    v_and_b32 v32, 1, v2
    v_lshl_add_u32 v32, v32, 2, v46
    v_lshlrev_b32 v32, 1, v32
    s_lshl_b32 s10, s3, 4
    v_add_u32 v32, s10, v32
    ds_write_b16 v32, v31 offset:%d
    s_waitcnt lgkmcnt(0)
    BAR
    s_branch L_FIN
    L_B_dn2:
    s_sub_u32 s10, s3, 4
    s_mul_i32 s10, s10, 9216
    s_lshl_b32 s15, s12, 6
    s_add_u32 s10, s10, s15
    s_add_u32 s10, s10, %d
    BAR
    ds_read_b128 v[24:27], v40 offset:%d
    s_waitcnt lgkmcnt(0)
    ''' % (f32(KK), f32(-2.0 * KB * LOG2E), HH, OUTP, HH))
    for cb in range(9):
        a('v_mfma_f32_16x16x32_bf16 %s, %s, v[24:27], 0' % (vr(84 + 4 * cb, 4), vr(48 + 4 * cb, 4)))
    a('s_mov_b32 exec_lo, 0x00010001'); a('s_mov_b32 exec_hi, 0x00010001')
    for cb in range(9):
        for r in range(4): tagw(84 + 4 * cb + r)
        a('buffer_store_dwordx4 %s, v40, %s, s10 offen sc1' % (vr(84 + 4 * cb, 4), srd(sWS)))
        if cb < 8: a('s_add_u32 s10, s10, 36864')
    a('s_mov_b64 exec, -1')
    a('s_branch L_FIN')

    a.label('L_roleC'); a.fence(4)
    a('''
    s_cmp_ge_u32 s3, 4
    s_cbranch_scc1 L_FIN
    s_lshl_b32 s10, s12, 4
    s_lshl_b32 s15, s3, 2
    s_add_u32 s10, s10, s15
    v_add_u32 v40, s10, v2
    v_lshlrev_b32 v44, 1, v40
    buffer_load_ushort v43, v44, %s, 0 offen
    v_lshlrev_b32 v40, 2, v40
    v_mul_u32_u24 v41, 2304, v3
    v_add_u32 v40, v40, v41
    v_mov_b32 v42, %d
    v_cmp_gt_u32 vcc, 8, v3
    v_cndmask_b32 v40, v42, v40, vcc
    v_cndmask_b32 v47, 0, v13, vcc
    s_mov_b32 s4, %d
    L_C_poll1:
    buffer_load_dword v24, v40, %s, s4 offen sc1
    s_waitcnt vmcnt(0)
    v_msad_u8 v25, v24, v47, 0
    v_cmp_ne_u32 vcc, 0, v25
    s_cbranch_vccz L_C_got1
    ''' % (srd(sX), OOB, YO, srd(sWS)))
    spin_guard('L_C_poll1')
    a.label('L_C_got1')
    for r in (8, 4, 2, 1):
        a('v_add_f32_dpp v24, v24, v24 row_ror:%d row_mask:0xf bank_mask:0xf' % r)
    a('''
    v_cvt_pk_bf16_f32 v24, v24, v24
    v_lshlrev_b32 v24, 16, v24
    v_lshlrev_b32 v43, 16, v43
    v_add_f32 v43, v43, v24
    v_cvt_pk_bf16_f32 v43, v43, v43
    v_lshlrev_b32 v43, 16, v43
    s_mul_i32 s4, s12, 9216
    s_lshl_b32 s15, s3, 4
    s_add_u32 s4, s4, s15
    s_add_u32 s4, s4, %d
    s_add_u32 s5, s4, 4096
    s_add_u32 s6, s4, 8192
    v_lshlrev_b32 v40, 6, v1
    v_cmp_gt_u32 vcc, 16, v1
    v_cndmask_b32 v41, v42, v40, vcc
    v_cndmask_b32 v47, 0, v13, vcc
    L_C_poll2:
    buffer_load_dwordx4 v[24:27], v40, %s, s4 offen sc1
    buffer_load_dwordx4 v[28:31], v40, %s, s5 offen sc1
    buffer_load_dwordx4 v[32:35], v41, %s, s6 offen sc1
    s_waitcnt vmcnt(0)
    v_msad_u8 v36, v24, v13, 0
    v_msad_u8 v37, v25, v13, 0
    v_msad_u8 v38, v32, v47, 0
    v_msad_u8 v36, v26, v13, v36
    v_msad_u8 v37, v27, v13, v37
    v_msad_u8 v38, v33, v47, v38
    v_msad_u8 v36, v28, v13, v36
    v_msad_u8 v37, v29, v13, v37
    v_msad_u8 v38, v34, v47, v38
    v_msad_u8 v36, v30, v13, v36
    v_msad_u8 v37, v31, v13, v37
    v_msad_u8 v38, v35, v47, v38
    v_or3_b32 v36, v36, v37, v38
    v_cmp_ne_u32 vcc, 0, v36
    s_cbranch_vccz L_C_got2
    ''' % (OUTP, srd(sWS), srd(sWS), srd(sWS)))
    spin_guard('L_C_poll2')
    a.label('L_C_got2')
    stamp(4)
    for r in range(4):
        a('v_add_f32 v%d, v%d, v%d' % (24 + r, 24 + r, 28 + r))
    for r in range(4):
        a('v_add_f32 v%d, v%d, v%d' % (24 + r, 24 + r, 32 + r))
    a('''
    v_permlane32_swap_b32 v24, v26
    v_permlane32_swap_b32 v25, v27
    v_add_f32 v24, v24, v26
    v_add_f32 v25, v25, v27
    v_permlane16_swap_b32 v24, v25
    v_add_f32 v24, v24, v25
    ''')
    for r in (8, 4, 2, 1):
        a('v_add_f32_dpp v24, v24, v24 row_ror:%d row_mask:0xf bank_mask:0xf' % r)
    a('''
    v_cvt_pk_bf16_f32 v24, v24, v24
    v_lshlrev_b32 v24, 16, v24
    v_add_f32 v24, v24, v43
    v_cvt_pk_bf16_f32 v24, v24, v24
    s_mov_b32 exec_lo, 0x00010001
    s_mov_b32 exec_hi, 0x00010001
    buffer_store_short v24, v44, %s, 0 offen
    s_add_u32 s4, s12, s3
    s_cmp_eq_u32 s4, 0
    s_cbranch_scc0 L_FIN
    s_mov_b64 exec, 1
    s_mov_b32 s4, %d
    buffer_store_dword v13, v4, %s, s4 offen sc1
    ''' % (srd(sOUT), EP, srd(sWS)))
    a.label('L_FIN')
    a('s_mov_b64 exec, -1')
    if cfg.dry:
        a('s_cmp_lg_u32 s%d, 0' % DRY); a('s_cbranch_scc1 L_after_dry')
    if cfg.stamps:
        a.fence(4)
        a('s_memrealtime s[4:5]')
        a('s_lshl_b32 s10, s2, 3'); a('s_add_u32 s10, s10, s3'); a('s_lshl_b32 s10, s10, 6'); a('s_add_u32 s10, s10, %d' % TS)
        a('s_waitcnt lgkmcnt(0)')
        for k in range(5):
            a('v_mov_b32 v%d, s%d' % (24 + k, 92 + 2 * k))
        a('v_mov_b32 v29, s4')
        a('s_getreg_b32 s4, hwreg(HW_REG_XCC_ID)'); a('v_mov_b32 v30, s4')
        a('v_mov_b32 v31, s91')
        if cfg.prof:
            a('s_lshl_b32 s15, s2, 3'); a('s_add_u32 s15, s15, s3'); a('s_lshl_b32 s15, s15, 8'); a('s_add_u32 s15, s15, %d' % PROF)
            a('v_lshlrev_b32 v40, 2, v1'); a('buffer_store_dword v222, v40, %s, s15 offen' % srd(sWS))
        a('v_mov_b32 v40, 0'); a('s_mov_b64 exec, 1')
        a('buffer_store_dwordx4 v[24:27], v40, %s, s10 offen' % srd(sWS))
        a('buffer_store_dwordx4 v[28:31], v40, %s, s10 offen offset:16' % srd(sWS))
        for k in range(8):
            a('v_mov_b32 v%d, s%d' % (32 + k, SP[5 + k]))
        a('buffer_store_dwordx4 v[32:35], v40, %s, s10 offen offset:32' % srd(sWS))
        a('buffer_store_dwordx4 v[36:39], v40, %s, s10 offen offset:48' % srd(sWS))
    a.label('L_END')
    a('s_endpgm')
    a.raw('''.section .rodata,"a"
.p2align 6
.amdhsa_kernel %s
  .amdhsa_next_free_vgpr 224
  .amdhsa_next_free_sgpr 102
  .amdhsa_accum_offset 224
  .amdhsa_group_segment_fixed_size 0
  .amdhsa_kernarg_size 96
  .amdhsa_user_sgpr_count 2
  .amdhsa_user_sgpr_kernarg_segment_ptr 1
  .amdhsa_system_sgpr_workgroup_id_x 1
.end_amdhsa_kernel''' % KN)
    return a.text()

if __name__ == '__main__':
    out = sys.argv[1]
    kw = {}
    for arg in sys.argv[2:]:
        k, v = arg.split('=')
        kw[k] = eval(v)
    open(out, 'w').write(gen(Cfg(**kw)))
```

```python
import sys, struct
from asmlib import Asm

KN = 'sequential_preLN__mha_block_cached__glu_gated_geglu__decode_kernel'

def f32(x):
    return '0x%08x' % struct.unpack('<I', struct.pack('<f', x))[0]

class Cfg:
    nt = True
    stamps = False
    spin_max = 2000000
    S = 96
    SB = 76
    wq_first = False
    prof = False
    pub_first = True
    force_b = 5
    early_b = True
    dry = False
    def __init__(self, **kw):
        for k, v in kw.items():
            assert hasattr(self, k), k
            setattr(self, k, v)

PART = 0
ML = 131072
YO = 135168
OUTP = 155648
TS = 524288
QX = 655360
EP = 786432
CT = 790528
WS_BYTES = 2 << 20
PROF = 1 << 20
OOB = 0x40000000
QB = 4096; WC = 0; WML = 4352; OB = 4608; ST = 5888; HH = 5952; CTR = 6080; WCTR = 6084; ARR = 6088; FLAG = 6092
WB = 6144
LDS_BYTES = WB + 73728
LOG2E = 1.4426950408889634
SCALE = 128 ** -0.5

class Asm2(Asm):
    nbar = 0
    dry = True
    def _emit(self, t):
        if t.startswith('STAMP'):
            k = int(t[5:])
            if self.stamps: Asm._emit(self, 's_memrealtime s[%d:%d]' % (self.SP[k], self.SP[k] + 1))
            return
        if t == 'BAR':
            if not self.dry:
                return Asm._emit(self, 's_barrier')
            self.nbar += 1
            Asm._emit(self, 's_cmp_lg_u32 s36, 0')
            Asm._emit(self, 's_cbranch_scc1 L_nb%d' % self.nbar)
            Asm._emit(self, 's_barrier')
            self.label('L_nb%d' % self.nbar)
            return
        Asm._emit(self, t)

def gen(cfg):
    a = Asm2()
    a.dry = cfg.dry
    a.stamps = cfg.stamps
    a.SP = [92, 94, 96, 98, 100, 16, 18, 20, 22, 24, 26, 28, 30]
    hdr = open('sequential_preLN__mha_block_cached__glu_gated_geglu__decode.s.ref').read().split('\n')
    for l in hdr:
        if l.startswith('; @launch'): break
        a.raw(l)
    a.raw('; @launch grid=(256,1,1) block=(512,1,1) lds=%d' % LDS_BYTES)
    a.raw('.amdgcn_target "amdgcn-amd-amdhsa--gfx950"\n.text\n.globl %s\n.p2align 8\n.type %s,@function' % (KN, KN))
    a.label(KN)
    NT = ' nt' if cfg.nt else ''
    LANE, G, I, L16 = 1, 2, 3, 4
    Q = 5
    VD0, VD1, VG0, ONE = 9, 10, 11, 12
    ACC = 14
    M, L, VTAG = 22, 23, 13
    T = 24
    KV = 48
    def Kr(s): return KV + 32 * s
    def Vr(s): return KV + 32 * s + 16
    WQR = 112
    XR = 184
    XS = 194
    XN = 204
    MK = 40
    sK, sV, sX, sWQ, sWO, sWG, sWU, sWS, sOUT, sDBG, sWD = 40, 44, 48, 52, 56, 60, 64, 68, 72, 76, 80
    sBASE, TAG, T0, sHAVE = 5, 37, 38, 39
    sWM, sNG, sN, sMASK, sRET, sC, sG, sC0, sCOFF, sNGI = 32, 33, 34, 35, 6, 7, 8, 78, 79, 36
    PT = 42
    GU = 176
    sWB = 1
    POOL0 = 8 * cfg.S
    DUMMY = 200
    def mk_tag():
        a('''
        s_waitcnt lgkmcnt(0)
        s_and_b32 s77, s76, 0xff
        s_add_u32 s%(TAG)d, s77, 1
        s_cmp_eq_u32 s77, 0xff
        s_cselect_b32 s%(TAG)d, 1, s%(TAG)d
        v_mov_b32 v%(VTAG)d, s%(TAG)d
        s_add_u32 s%(C0)d, s%(C0)d, s7
        s_sub_u32 s%(C0)d, s%(C0)d, %(POOL0)d
        ''' % dict(TAG=TAG, VTAG=VTAG, C0=sC0, POOL0=POOL0))
    def tagw(v):
        a('v_and_or_b32 v%d, v%d, s%d, v%d' % (v, v, sMASK, VTAG))
    def chk(regs, accs, ref='v13'):
        for k, r in enumerate(regs):
            ac = accs[k % len(accs)]
            a('v_msad_u8 v%d, v%d, %s, %s' % (ac, r, ref, '0' if k < len(accs) else 'v%d' % ac))
        if len(accs) == 2: a('v_or_b32 v%d, v%d, v%d' % (accs[0], accs[0], accs[1]))
        if len(accs) == 3: a('v_or3_b32 v%d, v%d, v%d, v%d' % (accs[0], accs[0], accs[1], accs[2]))
        a('v_cmp_ne_u32 vcc, 0, v%d' % accs[0])
    def srd(s): return 's[%d:%d]' % (s, s + 3)
    def vr(b, n): return 'v[%d:%d]' % (b, b + n - 1)
    SP = [92, 94, 96, 98, 100, 16, 18, 20, 22, 24, 26, 28, 30]
    def stamp(k):
        if cfg.stamps:
            a('s_memrealtime s[%d:%d]' % (SP[k], SP[k] + 1))
    def allreduce(v, t, op='v_add_f32'):
        for r in (8, 4, 2, 1):
            a('%s_dpp v%d, v%d, v%d row_ror:%d row_mask:0xf bank_mask:0xf' % (op, v, v, v, r))
        a('v_mov_b32 v%d, v%d' % (t, v)); a('v_permlane16_swap_b32 v%d, v%d' % (v, t)); a('%s v%d, v%d, v%d' % (op, v, v, t))
        a('v_mov_b32 v%d, v%d' % (t, v)); a('v_permlane32_swap_b32 v%d, v%d' % (v, t)); a('%s v%d, v%d, v%d' % (op, v, v, t))
    def load_tile(s, which, so='s9'):
        base = Kr(s) if which == 'K' else Vr(s)
        for c in range(4):
            a('buffer_load_dwordx4 %s, v%d, %s, %s offen offset:%d%s' % (vr(base + 4 * c, 4), L16, srd(sK if which == 'K' else sV), so, c * 1024, NT))
    def mk_srd(s, lo, nbytes):
        a('s_mov_b32 s%d, s%d' % (s, lo)); a('s_mov_b32 s%d, s%d' % (s + 1, lo + 1))
        a('s_mov_b32 s%d, %d' % (s + 2, nbytes)); a('s_mov_b32 s%d, 0x20000' % (s + 3))
    def ln_finish(mean, var, mb, sd, rc, t):
        a('v_cvt_pk_bf16_f32 v%d, v%d, v%d' % (t, mean, var))
        a('v_lshlrev_b32 v%d, 16, v%d' % (mb, t))
        a('v_and_b32 v%d, 0xffff0000, v%d' % (t, t))
        a('v_add_f32 v%d, %s, v%d' % (t, f32(1e-5), t))
        a('v_cvt_pk_bf16_f32 v%d, v%d, v%d' % (t, t, t))
        a('v_lshlrev_b32 v%d, 16, v%d' % (t, t))
        a('v_sqrt_f32 v%d, v%d' % (t, t))
        a('v_cvt_pk_bf16_f32 v%d, v%d, v%d' % (t, t, t))
        a('v_lshlrev_b32 v%d, 16, v%d' % (sd, t))
        a('v_rcp_f32 v%d, v%d' % (rc, sd))
    def spin_guard(lbl):
        a('s_add_u32 s91, s91, 1'); a('s_cmp_gt_u32 s91, %d' % cfg.spin_max); a('s_cbranch_scc1 L_END'); a('s_branch %s' % lbl)

    a('''
    s_cmp_ge_u32 s2, 256
    s_cbranch_scc1 L_END
    s_load_dwordx16 s[16:31], s[0:1], 0
    s_load_dwordx8 s[32:39], s[0:1], 64
    ''')
    stamp(0)
    a('''
    v_add_u32 v0, 448, v0
    v_and_b32 v1, 63, v0
    v_and_b32 v0, 511, v0
    v_lshrrev_b32 v24, 6, v0
    v_lshlrev_b32 v4, 4, v1
    v_readfirstlane_b32 s3, v24
    v_mov_b32 v24, 29
    v_mov_b32 v25, 0
    v_mov_b32 v26, 0
    v_mov_b32 v27, 0
    ds_write_b128 v25, v[24:27] offset:%(CTR)d
    v_lshrrev_b32 v2, 4, v1
    v_and_b32 v3, 15, v1
    s_lshr_b32 s4, s2, 3
    s_and_b32 s15, s2, 7
    s_lshl_b32 s6, s4, 22
    s_add_u32 s10, s2, s4
    s_and_b32 s10, s10, 7
    s_cmp_lt_u32 s4, 8
    s_cselect_b32 s7, 3, 2
    s_cmp_lt_u32 s10, s7
    s_cselect_b32 s14, %(D)d, 0
    s_sub_u32 s14, %(S)d, s14
    s_min_u32 s8, s10, s7
    s_mul_i32 s8, s8, %(D)d
    s_mul_i32 s%(BASE)d, s10, %(S)d
    s_sub_u32 s%(BASE)d, s%(BASE)d, s8
    s_mul_i32 s7, s7, %(D)d
    s_mov_b32 s42, 0x400000
    s_mov_b32 s43, 0x20000
    s_mov_b32 s46, 0x400000
    s_mov_b32 s47, 0x20000
    s_add_u32 s9, s3, s%(BASE)d
    s_lshl_b32 s9, s9, 12
    s_lshl_b32 s%(COFF)d, s4, 8
    s_add_u32 s%(COFF)d, s%(COFF)d, %(CT)d
    s_waitcnt lgkmcnt(0)
    s_load_dword s76, s[38:39], %(EP)d
    s_load_dword s%(C0)d, s[38:39], s%(COFF)d
    s_add_u32 s40, s18, s6
    s_addc_u32 s41, s19, 0
    s_add_u32 s44, s20, s6
    s_addc_u32 s45, s21, 0
    s_cmp_lt_u32 s3, 7
    s_cbranch_scc0 L_nofirst
    ''' % dict(CTR=CTR, OB=OB, BASE=sBASE, S=cfg.S, SB=cfg.SB, D=cfg.S - cfg.SB, COFF=sCOFF, CT=CT, EP=EP, C0=sC0))
    seq = [(b, wh) for b in (1, 2, 3, 0) for wh in 'KV']
    if cfg.wq_first: a('s_barrier')
    for j in range(2):
        s, wh = seq[j]
        load_tile(s, wh)
        if wh == 'V': a('s_add_u32 s9, s9, %d' % (7 * 4096))
    a.label('L_nofirst')
    mk_srd(sX, 16, 1152)
    mk_srd(sWQ, 22, 576 * 4096 * 2)
    a('s_cmp_eq_u32 s3, 7'); a('s_cbranch_scc0 L_notq')
    a('s_setprio 3')
    a('v_lshlrev_b32 v24, 1, v1')
    for k in range(9):
        a('buffer_load_ushort v%d, v24, %s, 0 offen offset:%d' % (XS + k, srd(sX), k * 128))
    a('s_mul_i32 s10, s15, 144')
    a('v_mul_u32_u24 v25, 36, v2')
    a('buffer_load_dwordx4 %s, v25, %s, s10 offen' % (vr(XR, 4), srd(sX)))
    a('buffer_load_dwordx4 %s, v25, %s, s10 offen offset:16' % (vr(XR + 4, 4), srd(sX)))
    a('buffer_load_dword v%d, v25, %s, s10 offen offset:32' % (XR + 8, srd(sX)))
    a('''
    v_mul_u32_u24 v24, %d, v2
    v_lshl_add_u32 v24, v3, 4, v24
    s_mul_i32 s10, s15, %d
    s_lshl_b32 s15, s4, 8
    s_add_u32 s10, s10, s15
    ''' % (18 * 8192, 72 * 8192))
    for t in range(18):
        a('buffer_load_dwordx4 %s, v24, %s, s10 offen%s' % (vr(WQR + 4 * t, 4), srd(sWQ), NT))
        if t < 17: a('s_add_u32 s10, s10, 8192')
    if cfg.wq_first: a('s_barrier')
    a.label('L_notq')
    mk_srd(sWS, 38, WS_BYTES)
    mk_srd(sWO, 24, 4096 * 576 * 2)
    mk_srd(sWG, 28, 576 * 4608 * 2)
    mk_srd(sWU, 30, 576 * 4608 * 2)
    mk_srd(sWD, 32, 4608 * 576 * 2)
    mk_srd(sOUT, 34, 1152)
    a('''
    s_add_u32 s10, s2, s4
    s_and_b32 s10, s10, 7
    s_mov_b32 s11, 0
    s_mov_b32 s%(NG)d, 18
    s_mov_b32 s0, %(FB)d
    s_cmp_lt_u32 s4, 8
    s_cbranch_scc0 L_role_y
    s_mul_i32 s12, s4, 3
    s_add_u32 s12, s12, s10
    s_cmp_lt_u32 s10, 3
    s_cbranch_scc1 L_role_done
    s_mov_b32 s11, 2
    s_mov_b32 s%(NG)d, 0
    s_mul_i32 s12, s4, 5
    s_add_u32 s12, s12, s10
    s_sub_u32 s12, s12, 3
    s_cmp_lt_u32 s12, 36
    s_cbranch_scc1 L_role_done
    s_mov_b32 s11, 3
    s_branch L_role_done
    L_role_y:
    s_lshl_b32 s12, s4, 1
    s_add_u32 s12, s12, s10
    s_add_u32 s12, s12, 8
    s_cmp_lt_u32 s10, 2
    s_cbranch_scc1 L_role_done
    s_mov_b32 s11, 1
    s_mov_b32 s%(NG)d, 16
    s_mul_i32 s12, s4, 3
    s_add_u32 s12, s12, s10
    s_sub_u32 s12, s12, 26
    s_lshr_b32 s13, s12, 3
    s_and_b32 s12, s12, 7
    s_cmp_lt_u32 s10, 5
    s_cbranch_scc1 L_role_done
    s_mov_b32 s11, 3
    s_mov_b32 s%(NG)d, 0
    L_role_done:
    s_mov_b32 s88, %(l2e)s
    s_mov_b32 s89, %(sc)s
    s_mov_b32 s91, 0
    s_mov_b32 s90, 0
    s_mov_b32 s%(HAVE)d, 0
    s_mov_b32 s%(G)d, 0
    s_mov_b32 s%(NGI)d, 0
    s_cmp_eq_u32 s11, 0
    s_cselect_b32 s1, 0, 5
    s_mov_b32 s%(MASK)d, 0xffffff00
    ''' % dict(NG=sNG, l2e=f32(LOG2E), sc=f32(SCALE), MASK=sMASK, HAVE=sHAVE, G=sG, NGI=sNGI, FB=cfg.force_b))
    mk_tag()
    a('''
    s_barrier
    s_cmp_eq_u32 s3, 7
    s_cbranch_scc0 L_pace
    ''')
    a.label('L_qwave')
    a('''
    v_and_b32 v24, 1, v1
    v_mov_b32 v25, 0xffff
    v_mov_b32 v26, 0xffff0000
    v_cmp_eq_u32 vcc, 1, v24
    v_cndmask_b32 v25, v25, v26, vcc
    v_bfe_u32 v24, v1, 1, 2
    ''')
    for r in range(4):
        a('v_cmp_eq_u32 vcc, %d, v24' % r)
        a('v_cndmask_b32 v%d, 0, v25, vcc' % (MK + r))
    a('s_waitcnt vmcnt(%d)' % (3 + 18))
    stamp(5)
    for k in range(9):
        a('v_lshlrev_b32 v%d, 16, v%d' % (XS + k, XS + k))
    a('v_add_f32 v24, v%d, v%d' % (XS, XS + 1))
    for k in range(2, 9):
        a('v_add_f32 v24, v24, v%d' % (XS + k))
    allreduce(24, 25)
    a('v_mul_f32 v24, %s, v24' % f32(1.0 / 576))
    a('v_sub_f32 v26, v%d, v24' % XS); a('v_mul_f32 v27, v26, v26')
    for k in range(1, 9):
        a('v_sub_f32 v26, v%d, v24' % (XS + k)); a('v_fmac_f32 v27, v26, v26')
    allreduce(27, 25)
    a('v_mul_f32 v27, %s, v27' % f32(1.0 / 576))
    ln_finish(24, 27, 28, 29, 30, 25)
    a('s_waitcnt vmcnt(%d)' % 18)
    for k in range(9):
        a('v_lshlrev_b32 v32, 16, v%d' % (XR + k))
        a('v_and_b32 v33, 0xffff0000, v%d' % (XR + k))
        a('v_sub_f32 v32, v32, v28'); a('v_sub_f32 v33, v33, v28')
        a('v_cvt_pk_bf16_f32 v34, v32, v33')
        a('v_lshlrev_b32 v32, 16, v34'); a('v_and_b32 v33, 0xffff0000, v34')
        a('v_mul_f32 v34, v32, v30'); a('v_mul_f32 v35, v33, v30')
        a('v_fma_f32 v32, -v34, v29, v32'); a('v_fma_f32 v33, -v35, v29, v33')
        a('v_fmac_f32 v34, v32, v30'); a('v_fmac_f32 v35, v33, v30')
        a('v_cvt_pk_bf16_f32 v%d, v34, v34' % (XN + 2 * k)); a('v_cvt_pk_bf16_f32 v%d, v35, v35' % (XN + 2 * k + 1))
    a('''
    v_lshl_add_u32 v44, v2, 3, v3
    v_lshlrev_b32 v44, 4, v44
    v_mov_b32 v45, %d
    v_cmp_gt_u32 vcc, 8, v3
    v_cndmask_b32 v44, v45, v44, vcc
    s_lshl_b32 s10, s2, 9
    s_add_u32 s10, s10, %d
    ''' % (OOB, QX))
    stamp(6)
    a('s_waitcnt vmcnt(0)')
    stamp(7)
    for t in range(18):
        b = 32 + 4 * (t & 1)
        for r in range(4):
            a('v_and_b32 v%d, v%d, v%d' % (b + r, XN + t, MK + r))
        a('v_mfma_f32_16x16x32_bf16 v[24:27], %s, %s, %s' % (vr(WQR + 4 * t, 4), vr(b, 4), '0' if t == 0 else 'v[24:27]'))
    for r in range(4): tagw(24 + r)
    a('''
    buffer_store_dwordx4 v[24:27], v44, %(WS)s, s10 offen sc1
    s_lshl_b32 s10, s4, 12
    s_add_u32 s10, s10, %(QX)d
    ''' % dict(WS=srd(sWS), QX=QX))
    stamp(8)
    a('''
    v_bfe_u32 v44, v1, 3, 2
    v_and_b32 v45, 7, v1
    v_lshl_add_u32 v44, v44, 5, v45
    v_lshlrev_b32 v44, 1, v44
    v_mov_b32 v45, 0
    v_mov_b32 v46, 1
    L_q_poll:
    ''')
    for k in range(4):
        a('buffer_load_dwordx4 %s, v4, %s, s10 offen offset:%d sc1' % (vr(24 + 4 * k, 4), srd(sWS), 1024 * k))
    a('s_waitcnt vmcnt(0)')
    chk(range(24, 40), [40, 41, 42])
    a('s_cbranch_vccz L_q_got')
    spin_guard('L_q_poll')
    a.label('L_q_got')
    stamp(9)
    for r in range(4):
        a('v_add_f32 v%d, v%d, v%d' % (24 + r, 24 + r, 28 + r)); a('v_add_f32 v%d, v%d, v%d' % (32 + r, 32 + r, 36 + r))
    for r in range(4):
        a('v_add_f32 v%d, v%d, v%d' % (24 + r, 24 + r, 32 + r))
    for r in range(4):
        a('v_mov_b32 v%d, v%d' % (28 + r, 24 + r))
    for r in range(4):
        a('v_permlane32_swap_b32 v%d, v%d' % (24 + r, 28 + r))
    for r in range(4):
        a('v_add_f32 v%d, v%d, v%d' % (24 + r, 24 + r, 28 + r))
    a('v_cvt_pk_bf16_f32 v24, v24, v25'); a('v_cvt_pk_bf16_f32 v26, v26, v27')
    a('''
    ds_write_b16 v44, v24 offset:%d
    ds_write_b16_d16_hi v44, v24 offset:%d
    ds_write_b16 v44, v26 offset:%d
    ds_write_b16_d16_hi v44, v26 offset:%d
    s_waitcnt lgkmcnt(0)
    ds_write_b32 v45, v46 offset:%d
    ''' % (QB, QB + 16, QB + 32, QB + 48, FLAG))
    stamp(10)
    a('s_setprio 0')
    a('s_add_u32 s%d, s%d, 28' % (T0, sBASE)); a('s_lshl_b32 s9, s%d, 12' % T0)
    load_tile(0, 'K'); load_tile(0, 'V')
    a('s_branch L_wait_q')

    a.label('L_pace')
    for j in range(2, 8):
        s, wh = seq[j]
        a('s_waitcnt vmcnt(4)')
        load_tile(s, wh)
        if wh == 'V' and j < 7: a('s_add_u32 s9, s9, %d' % (7 * 4096))
    a('s_mov_b32 s%d, 0' % T0)
    a('s_mov_b32 s90, 1')
    a.label('L_wait_q')
    a('''
    v_lshrrev_b32 v34, 3, v1
    v_mul_u32_u24 v34, 1152, v34
    v_and_b32 v35, 1, v2
    v_lshlrev_b32 v35, 1, v35
    v_and_b32 v32, 7, v1
    v_xor_b32 v32, v32, v35
    v_xor_b32 v33, 4, v32
    v_lshl_add_u32 v%(VD0)d, v32, 4, v34
    v_lshl_add_u32 v%(VD1)d, v33, 4, v34
    v_lshrrev_b32 v34, 3, v1
    v_mul_u32_u24 v34, 9216, v34
    v_and_b32 v36, 7, v1
    v_lshl_add_u32 v%(VG0)d, v36, 4, v34
    v_mov_b32 v%(ONE)d, 1
    v_mov_b32 v40, 0
    v_lshlrev_b32 v41, 4, v3
    ''' % dict(VD0=VD0, VD1=VD1, VG0=VG0, ONE=ONE))
    for e in range(8):
        a('v_mov_b32 v%d, 0' % (ACC + e))
    a('v_mov_b32 v%d, 0xff800000' % M)
    a('v_mov_b32 v%d, 0' % L)
    a('''
    L_qw:
    ds_read_b32 v42, v40 offset:%(FLAG)d
    ds_read_b128 v[24:27], v41 offset:%(QB)d
    s_waitcnt lgkmcnt(0)
    v_readfirstlane_b32 s10, v42
    s_mov_b32 s%(RET)d, 0
    s_cmp_lt_u32 s1, s0
    s_cbranch_scc1 L_qw_gu
    s_cmp_lt_u32 s%(G)d, s%(NG)d
    s_cselect_b32 s15, s11, 0
    s_cmp_eq_u32 s15, 1
    s_cbranch_scc1 L_qw_grp
    s_cmp_eq_u32 s10, 1
    s_cbranch_scc1 L_fl_got
    ''' % dict(FLAG=FLAG, QB=QB, G=sG, NG=sNG, RET=sRET))
    if cfg.early_b:
        a('s_cmp_lt_u32 s1, 5'); a('s_cbranch_scc1 L_qw_gu')
    a('''
    s_branch L_qw_idle
    L_qw_gu:
    s_add_u32 s%(NGI)d, s%(NGI)d, 1
    s_waitcnt vmcnt(4)
    s_branch L_gu
    L_qw_grp:
    s_mov_b64 exec, 1
    s_waitcnt vmcnt(4)
    ds_add_rtn_u32 v42, v4, v%(ONE)d offset:%(WCTR)d
    s_mov_b64 exec, -1
    s_waitcnt lgkmcnt(0)
    v_readfirstlane_b32 s%(G)d, v42
    s_cmp_ge_u32 s%(G)d, s%(NG)d
    s_cbranch_scc1 L_qw
    s_add_u32 s%(NGI)d, s%(NGI)d, 1
    s_branch L_dma
    L_qw_idle:
    s_sleep 1
    ''' % dict(ONE=ONE, WCTR=WCTR, G=sG, NG=sNG, NGI=sNGI))
    spin_guard('L_qw')
    a.label('L_fl_got')
    for r in range(4):
        a('v_mov_b32 v%d, v%d' % (Q + r, 24 + r))
    stamp(1)
    if cfg.prof: a('s_mov_b32 s77, 0'); a('v_mov_b32 v250, 0')
    a('''
    s_cmp_ge_u32 s%d, 2
    s_cbranch_scc1 L_landed
    s_waitcnt vmcnt(0)
    L_landed:
    s_cmp_eq_u32 s90, 0
    s_cbranch_scc1 L_loop
    s_mov_b64 exec, 1
    s_cmp_eq_u32 s90, 0
    s_branch L_loop_nw
    ''' % sNGI)

    S = T
    def qk(k0):
        for e in range(4):
            for c in range(4):
                if e == 0:
                    a('v_dot2_f32_bf16 v%d, v%d, v%d, 0' % (S + c, k0 + 4 * c, Q))
                else:
                    a('v_dot2c_f32_bf16 v%d, v%d, v%d' % (S + c, k0 + 4 * c + e, Q + e))
    def soft():
        for r in (8, 4, 2, 1):
            for c in range(4):
                a('v_add_f32_dpp v%d, v%d, v%d row_ror:%d row_mask:0xf bank_mask:0xf' % (S + c, S + c, S + c, r))
        a('v_cvt_pk_bf16_f32 v28, v24, v25'); a('v_cvt_pk_bf16_f32 v29, v26, v27')
        a('v_lshlrev_b32 v24, 16, v28'); a('v_and_b32 v25, 0xffff0000, v28')
        a('v_lshlrev_b32 v26, 16, v29'); a('v_and_b32 v27, 0xffff0000, v29')
        for c in range(4):
            a('v_mul_f32 v%d, s89, v%d' % (S + c, S + c))
        a('v_cvt_pk_bf16_f32 v28, v24, v25'); a('v_cvt_pk_bf16_f32 v29, v26, v27')
        a('v_lshlrev_b32 v24, 16, v28'); a('v_and_b32 v25, 0xffff0000, v28')
        a('v_lshlrev_b32 v26, 16, v29'); a('v_and_b32 v27, 0xffff0000, v29')
        a('v_max3_f32 v30, v24, v25, v%d' % M)
        a('v_max3_f32 v30, v26, v27, v30')
        a('v_sub_f32 v31, v%d, v30' % M)
        for c in range(4):
            a('v_sub_f32 v%d, v%d, v30' % (S + c, S + c))
        a('v_mul_f32 v31, s88, v31')
        for c in range(4):
            a('v_mul_f32 v%d, s88, v%d' % (S + c, S + c))
        a('v_exp_f32 v31, v31')
        for c in range(4):
            a('v_exp_f32 v%d, v%d' % (S + c, S + c))
        a('v_mov_b32 v%d, v30' % M)
        for e in range(8):
            a('v_mul_f32 v%d, v%d, v31' % (ACC + e, ACC + e))
        a('v_fma_f32 v%d, v%d, v31, v24' % (L, L))
        a('v_add_f32 v30, v25, v26')
        a('v_add_f32 v%d, v%d, v27' % (L, L))
        for c in range(4):
            a('v_cvt_pk_bf16_f32 v%d, v%d, 0' % (32 + 2 * c, S + c))
            a('v_cvt_pk_bf16_f32 v%d, 0, v%d' % (33 + 2 * c, S + c))
        a('v_add_f32 v%d, v%d, v30' % (L, L))
    def pv(v0_):
        for c in range(4):
            for e in range(4):
                a('v_dot2c_f32_bf16 v%d, v%d, v%d' % (ACC + 2 * e, v0_ + 4 * c + e, 32 + 2 * c))
                a('v_dot2c_f32_bf16 v%d, v%d, v%d' % (ACC + 2 * e + 1, v0_ + 4 * c + e, 33 + 2 * c))
        if cfg.prof:
            a('s_memrealtime s[84:85]'); a('s_waitcnt lgkmcnt(0)'); a('s_mov_b32 m0, s77'); a('v_writelane_b32 v250, s84, m0'); a('s_add_u32 s77, s77, 1')
    a.label('L_loop')
    a('''
    s_mov_b64 exec, 1
    s_bitcmp1_b32 s%(T)d, 11
    s_waitcnt vmcnt(4)
    L_loop_nw:
    ds_add_rtn_u32 v40, v4, v%(ONE)d offset:%(CTR)d
    v_readfirstlane_b32 s10, v%(PT)d
    s_mov_b64 exec, -1
    s_cbranch_scc1 L_skipK
    ''' % dict(T=T0, ONE=ONE, CTR=CTR, PT=PT))
    qk(Kr(0))
    a('''
    L_skipK:
    s_cmp_eq_u32 s90, 0
    s_cselect_b32 s%(WM)d, 2, 0
    s_waitcnt lgkmcnt(0)
    v_readfirstlane_b32 s%(C)d, v40
    s_add_u32 s%(N)d, s%(C)d, s%(BASE)d
    s_cmp_lt_u32 s%(C)d, s14
    s_cbranch_scc1 L_st
    s_sub_u32 s%(N)d, s10, s%(C0)d
    s_cmp_eq_u32 s%(HAVE)d, 0
    s_cselect_b32 s%(N)d, 2048, s%(N)d
    s_mov_b32 s%(HAVE)d, 1
    s_bitcmp1_b32 s%(N)d, 10
    s_cselect_b32 s%(WM)d, 2, 1
    L_st:
    s_lshl_b32 s9, s%(N)d, 12
    ''' % dict(WM=sWM, C=sC, N=sN, BASE=sBASE, S=cfg.S, C0=sC0, POOL0=POOL0, HAVE=sHAVE))
    load_tile(0, 'K')
    a('''
    s_cmp_eq_u32 s%(WM)d, 1
    s_cbranch_scc0 L_noat
    v_mov_b32 v%(PT)d, 1
    s_mov_b64 exec, 1
    buffer_atomic_add v%(PT)d, v4, %(WS)s, s%(COFF)d offen sc0 sc1
    s_mov_b64 exec, -1
    L_noat:
    s_bitcmp1_b32 s%(T)d, 11
    s_cbranch_scc1 L_skipV
    ''' % dict(WM=sWM, PT=PT, WS=srd(sWS), COFF=sCOFF, T=T0))
    soft()
    a('''
    s_cmp_eq_u32 s%(WM)d, 0
    s_cbranch_scc1 L_vw
    s_cmp_eq_u32 s%(WM)d, 1
    s_waitcnt vmcnt(5)
    s_cbranch_scc1 L_vw
    s_waitcnt vmcnt(4)
    L_vw:
    ''' % dict(WM=sWM))
    pv(Vr(0))
    a('''
    L_skipV:
    s_bitcmp1_b32 s%(N)d, 10
    s_cbranch_scc1 L_tail
    s_mov_b32 s%(T)d, s%(N)d
    ''' % dict(T=T0, N=sN))
    load_tile(0, 'V')
    a('s_cmp_eq_u32 s90, 0'); a('s_cbranch_scc1 L_loop')
    a('s_mov_b32 s90, 0')
    for s in range(1, 4):
        qk(Kr(s)); soft(); pv(Vr(s))
    a('s_branch L_loop')
    a('''
    L_gu:
    s_mul_i32 s10, s3, 9
    s_lshl_b32 s15, s1, 1
    s_add_u32 s10, s10, s15
    s_mul_i32 s10, s10, 73728
    s_lshl_b32 s15, s12, 7
    s_add_u32 s10, s10, s15
    s_add_u32 s15, s10, 73728
    s_add_u32 s1, s1, 1
    ''')
    for blk in range(5):
        if blk < 4:
            a('s_cmp_eq_u32 s1, %d' % (blk + 1)); a('s_cbranch_scc0 L_gu%d' % (blk + 1))
        for tt in range(2 if blk < 4 else 1):
            t = 2 * blk + tt
            a('buffer_load_dwordx4 %s, v%d, %s, %s offen%s' % (vr(GU + 8 * t, 4), VG0, srd(sWG), ('s10', 's15')[tt], NT))
            a('buffer_load_dwordx4 %s, v%d, %s, %s offen%s' % (vr(GU + 8 * t + 4, 4), VG0, srd(sWU), ('s10', 's15')[tt], NT))
        a('s_branch L_dg_next')
        if blk < 4: a.label('L_gu%d' % (blk + 1))
    a('''
    L_dma:
    s_lshl_b32 s15, s%(G)d, 12
    s_add_u32 s15, s15, %(WB)d
    s_mov_b32 s87, 0x20000
    s_cmp_eq_u32 s11, 1
    s_cbranch_scc0 L_dg_D
    s_mov_b32 s84, s56
    s_mov_b32 s85, s57
    s_mov_b32 s86, %(WOB)d
    s_lshl_b32 s10, s12, 4
    s_add_u32 s10, s10, s%(G)d
    s_mul_i32 s10, s10, 36864
    s_lshl_b32 s9, s13, 7
    s_add_u32 s10, s10, s9
    s_branch L_dg_P
    L_dg_D:
    s_mov_b32 s84, s80
    s_mov_b32 s85, s81
    s_mov_b32 s86, %(WDB)d
    s_mul_i32 s10, s12, 73728
    s_lshl_b32 s9, s%(G)d, 7
    s_add_u32 s10, s10, s9
    s_cmp_ge_u32 s%(G)d, 9
    s_cselect_b32 s9, 36864 - 1152, 0
    s_add_u32 s10, s10, s9
    L_dg_P:
    ''' % dict(G=sG, WB=WB, WOB=4096 * 576 * 2, WDB=4608 * 576 * 2))
    for k in range(4):
        a('s_mov_b32 m0, s15')
        a('buffer_load_dwordx4 v%d, s[84:87], s10 offen%s lds' % ((VD0, VD1)[k & 1], NT))
        if k < 3: a('s_add_u32 s10, s10, 9216'); a('s_add_u32 s15, s15, 1024')
    a('''
    L_dg_next:
    s_cmp_eq_u32 s%(RET)d, 0
    s_cbranch_scc1 L_qw
    s_branch L_we2
    ''' % dict(RET=sRET))

    a.label('L_tail')
    stamp(2)
    a('s_mov_b32 s91, 0')

    a.fence(4)
    a('v_mov_b32 v24, v%d' % M); a('v_mov_b32 v25, v%d' % M)
    a('v_permlane16_swap_b32 v24, v25'); a('v_max_f32 v24, v24, v25')
    a('v_mov_b32 v25, v24'); a('v_permlane32_swap_b32 v24, v25'); a('v_max_f32 v24, v24, v25')
    a('v_sub_f32 v26, v%d, v24' % M); a('v_mul_f32 v26, s88, v26'); a('v_exp_f32 v26, v26')
    for e in range(8):
        a('v_mul_f32 v%d, v%d, v26' % (ACC + e, ACC + e))
    a('v_mul_f32 v25, v%d, v26' % L)
    for e in range(4):
        a('v_permlane32_swap_b32 v%d, v%d' % (ACC + e, ACC + e + 4))
    a('v_mov_b32 v27, v25'); a('v_permlane16_swap_b32 v25, v27')
    for e in range(4):
        a('v_add_f32 v%d, v%d, v%d' % (ACC + e, ACC + e, ACC + e + 4))
    a('v_add_f32 v25, v25, v27')
    for e in range(2):
        a('v_permlane16_swap_b32 v%d, v%d' % (ACC + e, ACC + e + 2))
    a('v_mov_b32 v27, v25'); a('v_permlane32_swap_b32 v25, v27')
    for e in range(2):
        a('v_add_f32 v%d, v%d, v%d' % (ACC + e, ACC + e, ACC + e + 2))
    a('v_add_f32 v25, v25, v27')
    a('''
    v_lshlrev_b32 v40, 5, v3
    v_lshl_add_u32 v40, v2, 3, v40
    s_lshl_b32 s10, s3, 9
    v_add_u32 v40, s10, v40
    ds_write_b64 v40, v[%d:%d] offset:%d
    s_lshl_b32 s10, s3, 3
    v_mov_b32 v41, s10
    s_mov_b64 exec, 1
    ds_write_b64 v41, v[24:25] offset:%d
    ds_add_rtn_u32 v41, v4, v%d offset:%d
    s_mov_b64 exec, -1
    v_lshlrev_b32 v40, 3, v1
    s_waitcnt lgkmcnt(0)
    v_readfirstlane_b32 s10, v41
    s_cmp_eq_u32 s10, 7
    s_cbranch_scc0 L_comb_skip
    v_mov_b32 v41, 0
    ''' % (ACC, ACC + 1, WC, WML, ONE, ARR))
    for k in range(4):
        a('ds_read_b128 %s, v41 offset:%d' % (vr(24 + 4 * k, 4), WML + 16 * k))
    for k in range(8):
        a('ds_read_b64 %s, v40 offset:%d' % (vr(80 + 2 * k, 2), WC + 512 * k))
    a('s_waitcnt lgkmcnt(8)')
    a('v_max3_f32 v42, v24, v26, v28'); a('v_max3_f32 v42, v30, v32, v42'); a('v_max3_f32 v42, v34, v36, v42'); a('v_max_f32 v42, v38, v42')
    for k in range(8):
        a('v_sub_f32 v%d, v%d, v42' % (24 + 2 * k, 24 + 2 * k))
    for k in range(8):
        a('v_mul_f32 v%d, s88, v%d' % (24 + 2 * k, 24 + 2 * k))
    for k in range(8):
        a('v_exp_f32 v%d, v%d' % (24 + 2 * k, 24 + 2 * k))
    a('s_waitcnt lgkmcnt(0)')
    a('v_mul_f32 v44, v24, v80'); a('v_mul_f32 v45, v24, v81'); a('v_mul_f32 v43, v24, v25')
    for k in range(1, 8):
        a('v_fmac_f32 v44, v%d, v%d' % (24 + 2 * k, 80 + 2 * k))
        a('v_fmac_f32 v45, v%d, v%d' % (24 + 2 * k, 81 + 2 * k))
        a('v_fmac_f32 v43, v%d, v%d' % (24 + 2 * k, 25 + 2 * k))
    tagw(44); tagw(45); tagw(42); tagw(43)
    a('''
    s_lshl_b32 s10, s2, 9
    buffer_store_dwordx2 v[44:45], v40, %s, s10 offen sc1
    s_lshl_b32 s10, s2, 4
    s_add_u32 s10, s10, %d
    s_mov_b64 exec, 1
    buffer_store_dwordx2 v[42:43], v41, %s, s10 offen sc1
    s_mov_b64 exec, -1
    L_comb_skip:
    ''' % (srd(sWS), ML, srd(sWS)))
    stamp(3)
    if cfg.pub_first: a('s_barrier')
    a('''
    s_mov_b32 s%(RET)d, 1
    L_we:
    s_cmp_lt_u32 s1, 5
    s_cbranch_scc1 L_gu
    s_cmp_ge_u32 s%(G)d, s%(NG)d
    s_cbranch_scc1 L_wdone
    s_mov_b64 exec, 1
    ds_add_rtn_u32 v42, v4, v%(ONE)d offset:%(WCTR)d
    s_mov_b64 exec, -1
    s_waitcnt lgkmcnt(0)
    v_readfirstlane_b32 s%(G)d, v42
    s_cmp_lt_u32 s%(G)d, s%(NG)d
    s_cbranch_scc1 L_dma
    s_branch L_wdone
    L_we2:
    s_waitcnt vmcnt(4)
    s_branch L_we
    L_wdone:
    ''' % dict(RET=sRET, G=sG, NG=sNG, ONE=ONE, WCTR=WCTR))
    a('s_waitcnt vmcnt(0)'); a('BAR')
    a('''
    v_bfe_u32 v45, v1, 2, 2
    v_and_b32 v46, 3, v1
    s_cmp_eq_u32 s11, 0
    s_cbranch_scc1 L_roleB
    s_cmp_eq_u32 s11, 1
    s_cbranch_scc1 L_roleA
    s_cmp_eq_u32 s11, 2
    s_cbranch_scc1 L_roleC
    s_branch L_FIN
    ''')
    def p128_addr(dst, ct_sreg, base):
        a('''
        v_lshl_add_u32 v%(d)d, v2, 3, v45
        v_lshlrev_b32 v%(d)d, 7, v%(d)d
        v_lshrrev_b32 v42, 1, v45
        v_and_b32 v43, 1, v2
        v_lshl_add_u32 v42, v43, 1, v42
        v_xor_b32 v42, s%(ct)d, v42
        v_lshl_add_u32 v%(d)d, v42, 5, v%(d)d
        v_lshl_add_u32 v%(d)d, v46, 3, v%(d)d
        v_add_u32 v%(d)d, %(base)d, v%(d)d
        ''' % dict(d=dst, ct=ct_sreg, base=base))
    a.label('L_roleA'); a.fence(4)
    a('s_cmp_ge_u32 s3, 4'); a('s_cbranch_scc1 L_A_now')
    p128_addr(47, 3, WB)
    for ks in range(16):
        a('ds_read_b64_tr_b16 %s, v47 offset:%d' % (vr(48 + 4 * ks, 2), ks * 4096))
        a('ds_read_b64_tr_b16 %s, v47 offset:%d' % (vr(50 + 4 * ks, 2), ks * 4096 + 512))
    a.label('L_A_now')
    a('''
    s_lshl_b32 s10, s12, 2
    s_lshr_b32 s15, s3, 1
    s_add_u32 s10, s10, s15
    s_lshl_b32 s15, s10, 7
    s_add_u32 s15, s15, %d
    s_lshl_b32 s10, s10, 12
    s_and_b32 s84, s3, 1
    s_lshl_b32 s84, s84, 8
    s_add_u32 s10, s10, s84
    v_lshlrev_b32 v40, 2, v1
    v_and_b32 v41, 7, v1
    v_lshlrev_b32 v41, 4, v41
    L_A_poll:
    ''' % ML)
    a('buffer_load_dwordx2 v[32:33], v41, %s, s15 offen sc1' % srd(sWS))
    for k in range(8):
        a('buffer_load_dword v%d, v40, %s, s10 offen offset:%d sc1' % (24 + k, srd(sWS), 512 * k))
    a('s_waitcnt vmcnt(0)')
    chk(range(24, 34), [34, 35, 36])
    a('s_cbranch_vccz L_A_got')
    spin_guard('L_A_poll')
    a.label('L_A_got')
    stamp(4)
    a('v_and_b32 v32, s%d, v32' % sMASK)
    a('''
    v_max_f32_dpp v34, v32, v32 quad_perm:[1,0,3,2] row_mask:0xf bank_mask:0xf
    v_max_f32_dpp v34, v34, v34 quad_perm:[2,3,0,1] row_mask:0xf bank_mask:0xf
    v_max_f32_dpp v34, v34, v34 row_half_mirror row_mask:0xf bank_mask:0xf
    v_sub_f32 v35, v32, v34
    v_mul_f32 v35, s88, v35
    v_exp_f32 v35, v35
    v_mul_f32 v36, v35, v33
    v_add_f32_dpp v36, v36, v36 quad_perm:[1,0,3,2] row_mask:0xf bank_mask:0xf
    v_add_f32_dpp v36, v36, v36 quad_perm:[2,3,0,1] row_mask:0xf bank_mask:0xf
    v_add_f32_dpp v36, v36, v36 row_half_mirror row_mask:0xf bank_mask:0xf
    v_rcp_f32 v36, v36
    v_mul_f32 v35, v35, v36
    ''')
    sc = [4, 5, 6, 7, 8, 84, 85, 86]
    for k in range(8):
        a('v_readlane_b32 s%d, v35, %d' % (sc[k], k))
    a('v_mul_f32 v36, s%d, v24' % sc[0])
    for k in range(1, 8):
        a('v_fmac_f32 v36, s%d, v%d' % (sc[k], 24 + k))
    a('''
    v_cvt_pk_bf16_f32 v36, v36, v36
    v_lshlrev_b32 v40, 1, v0
    ds_write_b16 v40, v36 offset:%d
    s_waitcnt lgkmcnt(0)
    BAR
    s_cmp_ge_u32 s3, 4
    s_cbranch_scc1 L_FIN
    v_lshlrev_b32 v40, 4, v2
    ''' % OB)
    for ks in range(16):
        a('ds_read_b128 %s, v40 offset:%d' % (vr(112 + 4 * ks, 4), OB + 64 * ks))
    a('''
    s_mul_i32 s10, s12, 2304
    s_lshl_b32 s15, s13, 8
    s_add_u32 s10, s10, s15
    s_lshl_b32 s15, s3, 6
    s_add_u32 s10, s10, s15
    s_add_u32 s10, s10, %d
    ''' % YO)
    for ks in range(16):
        a('s_waitcnt lgkmcnt(%d)' % min(15, 15 - ks))
        a('v_mfma_f32_16x16x32_bf16 v[24:27], %s, %s, %s' % (vr(48 + 4 * ks, 4), vr(112 + 4 * ks, 4), '0' if ks == 0 else 'v[24:27]'))
    for r in range(4): tagw(24 + r)
    a('''
    s_mov_b32 exec_lo, 0x00010001
    s_mov_b32 exec_hi, 0x00010001
    buffer_store_dwordx4 v[24:27], v40, %s, s10 offen sc1
    s_mov_b64 exec, -1
    s_branch L_FIN
    ''' % srd(sWS))

    a.label('L_roleB'); a.fence(4)
    a('s_and_b32 s10, s3, 3')
    p128_addr(47, 10, WB)
    a('s_lshr_b32 s10, s3, 2'); a('s_lshl_b32 s10, s10, 12'); a('v_add_u32 v47, s10, v47'); a('v_add_u32 v43, 36864, v47')
    for m in range(5):
        for ks in range(2):
            a('ds_read_b64_tr_b16 %s, v%d offset:%d' % (vr(48 + 8 * m + 4 * ks, 2), (47, 43)[ks], m * 8192))
            a('ds_read_b64_tr_b16 %s, v%d offset:%d' % (vr(50 + 8 * m + 4 * ks, 2), (47, 43)[ks], m * 8192 + 512))
    a('''
    v_and_b32 v24, 1, v1
    v_mov_b32 v25, 0xffff
    v_mov_b32 v26, 0xffff0000
    v_cmp_eq_u32 vcc, 1, v24
    v_cndmask_b32 v25, v25, v26, vcc
    v_bfe_u32 v24, v1, 1, 2
    ''')
    for r in range(4):
        a('v_cmp_eq_u32 vcc, %d, v24' % r)
        a('v_cndmask_b32 v%d, 0, v25, vcc' % (88 + r))
    a('''
    s_lshl_b32 s10, s3, 9
    v_mul_u32_u24 v92, 96, v46
    v_lshrrev_b32 v24, 2, v1
    v_lshl_add_u32 v92, v24, 2, v92
    v_add_u32 v92, s10, v92
    v_lshrrev_b32 v24, 3, v1
    v_mul_u32_u24 v93, 48, v24
    v_add_u32 v93, s10, v93
    v_and_b32 v25, 7, v1
    v_lshl_add_u32 v94, v2, 3, v25
    v_lshlrev_b32 v94, 4, v94
    v_bfe_u32 v24, v1, 3, 1
    v_mul_u32_u24 v97, 2176, v24
    v_add_u32 v97, v97, v94
    s_mul_i32 s15, s3, 544
    v_add_u32 v94, s15, v94
    v_lshrrev_b32 v26, 5, v1
    v_lshl_add_u32 v26, v24, 1, v26
    v_lshl_add_u32 v25, v26, 3, v25
    v_and_b32 v24, 1, v2
    v_lshl_add_u32 v25, v24, 5, v25
    v_lshl_add_u32 v95, v25, 1, s10
    v_lshl_add_u32 v96, v2, 4, s10
    ''')
    a.label('L_B_now')
    a('''
    s_mul_i32 s10, s3, 144
    v_lshlrev_b32 v40, 2, v1
    v_add_u32 v40, s10, v40
    v_mov_b32 v42, %d
    v_cmp_gt_u32 s[84:85], 36, v1
    v_cndmask_b32 v40, v42, v40, s[84:85]
    buffer_load_dword v44, v40, %s, 0 offen
    v_lshlrev_b32 v41, 1, v40
    v_cndmask_b32 v41, v42, v41, s[84:85]
    v_cndmask_b32 v47, 0, v13, s[84:85]
    s_mov_b32 s4, %d
    s_mov_b32 s5, %d
    s_mov_b32 s6, %d
    s_mov_b32 s7, %d
    L_B_poll:
    ''' % (OOB, srd(sX), YO, YO + 4608, YO + 9216, YO + 13824))
    for p in range(8):
        a('buffer_load_dwordx2 %s, v41, %s, s%d offen offset:%d sc1' % (vr(24 + 2 * p, 2), srd(sWS), 4 + p // 2, (p & 1) * 2304))
    a('s_waitcnt vmcnt(0)')
    chk(range(24, 40), [40, 42, 43], 'v47')
    a('s_cbranch_vccz L_B_got')
    spin_guard('L_B_poll')
    a.label('L_B_got')
    stamp(4)
    for p in range(1, 8):
        a('v_add_f32 v24, v24, v%d' % (24 + 2 * p)); a('v_add_f32 v25, v25, v%d' % (25 + 2 * p))
    a('''
    v_cvt_pk_bf16_f32 v26, v24, v25
    v_lshlrev_b32 v24, 16, v26
    v_and_b32 v25, 0xffff0000, v26
    v_lshlrev_b32 v26, 16, v44
    v_and_b32 v27, 0xffff0000, v44
    v_add_f32 v24, v24, v26
    v_add_f32 v25, v25, v27
    v_cvt_pk_bf16_f32 v26, v24, v25
    v_lshlrev_b32 v24, 16, v26
    v_and_b32 v25, 0xffff0000, v26
    v_add_f32 v28, v24, v25
    ''')
    allreduce(28, 30)
    a('''
    v_mul_f32 v30, %s, v28
    v_sub_f32 v31, v24, v30
    v_sub_f32 v32, v25, v30
    v_mul_f32 v29, v31, v31
    v_fmac_f32 v29, v32, v32
    v_cndmask_b32 v29, 0, v29, s[84:85]
    ''' % f32(1.0 / 72))
    allreduce(29, 30)
    a('''
    s_lshl_b32 s10, s3, 3
    v_mov_b32 v42, s10
    s_mov_b64 exec, 1
    ds_write_b64 v42, v[28:29] offset:%d
    s_mov_b64 exec, -1
    v_mov_b32 v42, 0
    s_waitcnt lgkmcnt(0)
    BAR
    ''' % ST)
    stamp(5)
    for k in range(4):
        a('ds_read_b128 %s, v42 offset:%d' % (vr(28 + 4 * k, 4), ST + 16 * k))
    a('s_waitcnt lgkmcnt(0)')
    a('v_add_f32 v26, v28, v30'); a('v_add_f32 v27, v29, v31')
    for k in range(2, 8):
        a('v_add_f32 v26, v26, v%d' % (28 + 2 * k)); a('v_add_f32 v27, v27, v%d' % (29 + 2 * k))
    a('v_mul_f32 v26, %s, v26' % f32(1.0 / 576))
    a('s_mov_b32 s10, %s' % f32(1.0 / 72))
    for k in range(8):
        a('v_fma_f32 v%d, v%d, s10, -v26' % (28 + 2 * k, 28 + 2 * k))
    a('v_mul_f32 v29, v28, v28')
    for k in range(1, 8):
        a('v_fmac_f32 v29, v%d, v%d' % (28 + 2 * k, 28 + 2 * k))
    a('v_fmac_f32 v27, %s, v29' % f32(72.0))
    a('v_mul_f32 v27, %s, v27' % f32(1.0 / 576))
    ln_finish(26, 27, 28, 29, 30, 31)
    a('''
    v_sub_f32 v32, v24, v28
    v_sub_f32 v33, v25, v28
    v_cvt_pk_bf16_f32 v34, v32, v33
    v_lshlrev_b32 v32, 16, v34
    v_and_b32 v33, 0xffff0000, v34
    v_mul_f32 v34, v32, v30
    v_mul_f32 v35, v33, v30
    v_fma_f32 v32, -v34, v29, v32
    v_fma_f32 v33, -v35, v29, v33
    v_fmac_f32 v34, v32, v30
    v_fmac_f32 v35, v33, v30
    v_cvt_pk_bf16_f32 v34, v34, v34
    v_cvt_pk_bf16_f32 v35, v35, v35
    s_mov_b64 exec, s[84:85]
    ds_write_b32 v92, v34 offset:%(WC)d
    ds_write_b32 v92, v35 offset:%(WC48)d
    s_mov_b64 exec, -1
    ds_read_b128 v[100:103], v93 offset:%(WC)d
    ds_read_b128 v[104:107], v93 offset:%(WC16)d
    ds_read_b32 v108, v93 offset:%(WC32)d
    v_lshlrev_b32 v40, 4, v2
    s_mul_i32 s10, s3, 4608
    s_lshl_b32 s15, s12, 6
    s_add_u32 s10, s10, s15
    s_add_u32 s10, s10, %(OUTP)d
    ''' % dict(WC=WC, WC48=WC + 48, WC16=WC + 16, WC32=WC + 32, OUTP=OUTP))
    stamp(6)
    for t in range(9):
        if t in (0, 4, 8): a('s_waitcnt lgkmcnt(%d)' % ({0: 2, 4: 1, 8: 0}[t] if not cfg.stamps else 0))
        b = 32 + 4 * (t & 1)
        for r in range(4):
            a('v_and_b32 v%d, v%d, v%d' % (b + r, 100 + t, 88 + r))
        a('v_mfma_f32_16x16x32_bf16 v[24:27], %s, %s, %s' % (vr(GU + 8 * t, 4), vr(b, 4), '0' if t == 0 else 'v[24:27]'))
        a('v_mfma_f32_16x16x32_bf16 v[28:31], %s, %s, %s' % (vr(GU + 8 * t + 4, 4), vr(b, 4), '0' if t == 0 else 'v[28:31]'))
    stamp(7)
    for r in range(4):
        a('v_permlane32_swap_b32 v%d, v%d' % (24 + r, 28 + r))
    for r in range(4):
        a('v_add_f32_dpp v%d, v%d, v%d row_ror:8 row_mask:0xf bank_mask:0xf' % (24 + r, 28 + r, 24 + r))
    KB = 0.7978845608028654; KK = 0.044715
    a('''
    s_mov_b32 exec_lo, 0x00ff00ff
    s_mov_b32 exec_hi, 0x00ff00ff
    ds_write_b128 v94, v[24:27] offset:%d
    s_mov_b64 exec, -1
    s_waitcnt lgkmcnt(0)
    STAMP8
    BAR
    STAMP9
    ''' % WB)
    for k in range(4):
        a('ds_read_b128 %s, v97 offset:%d' % (vr(24 + 4 * k, 4), WB + 544 * k))
    a('s_waitcnt lgkmcnt(%d)' % (0 if cfg.stamps else 2))
    for r in range(4):
        a('v_add_f32 v%d, v%d, v%d' % (24 + r, 24 + r, 28 + r))
    a('s_waitcnt lgkmcnt(0)')
    for r in range(4):
        a('v_add_f32 v%d, v%d, v%d' % (32 + r, 32 + r, 36 + r))
    for r in range(4):
        a('v_add_f32 v%d, v%d, v%d' % (24 + r, 24 + r, 32 + r))
    a('''
    v_add_f32_dpp v28, v24, v24 row_ror:8 row_mask:0xf bank_mask:0x3
    v_add_f32_dpp v29, v25, v25 row_ror:8 row_mask:0xf bank_mask:0x3
    v_add_f32_dpp v28, v26, v26 row_ror:8 row_mask:0xf bank_mask:0xc
    v_add_f32_dpp v29, v27, v27 row_ror:8 row_mask:0xf bank_mask:0xc
    v_permlane32_swap_b32 v28, v29
    v_cvt_pk_bf16_f32 v30, v28, v29
    v_lshlrev_b32 v28, 16, v30
    v_and_b32 v29, 0xffff0000, v30
    v_mul_f32 v30, v28, v28
    v_mul_f32 v30, v30, v28
    v_mov_b32 v31, v28
    v_fmac_f32 v31, %s, v30
    v_mul_f32 v31, %s, v31
    v_exp_f32 v31, v31
    v_add_f32 v31, 1.0, v31
    v_rcp_f32 v31, v31
    v_mul_f32 v31, v28, v31
    v_cvt_pk_bf16_f32 v31, v31, v31
    v_lshlrev_b32 v31, 16, v31
    v_mul_f32 v31, v31, v29
    v_cvt_pk_bf16_f32 v31, v31, v31
    ds_write_b16 v95, v31 offset:%d
    ds_read_b128 v[24:27], v96 offset:%d
    ds_read_b128 v[28:31], v96 offset:%d
    s_waitcnt lgkmcnt(1)
    ''' % (f32(KK), f32(-2.0 * KB * LOG2E), WC + 384, WC + 384, WC + 384 + 64))
    stamp(10)
    if cfg.stamps: a('s_waitcnt lgkmcnt(0)')
    for m in range(5):
        a('v_mfma_f32_16x16x32_bf16 %s, %s, v[24:27], 0' % (vr(100 + 4 * m, 4), vr(48 + 8 * m, 4)))
    a('s_waitcnt lgkmcnt(0)')
    for m in range(5):
        a('v_mfma_f32_16x16x32_bf16 %s, %s, v[28:31], %s' % (vr(100 + 4 * m, 4), vr(52 + 8 * m, 4), vr(100 + 4 * m, 4)))
    a('s_mov_b32 exec_lo, 0x00010001'); a('s_mov_b32 exec_hi, 0x00010001')
    for m in range(5):
        if m == 4:
            a('s_cmp_ge_u32 s3, 4'); a('s_cbranch_scc1 L_FIN')
        for r in range(4): tagw(100 + 4 * m + r)
        a('buffer_store_dwordx4 %s, v40, %s, s10 offen sc1' % (vr(100 + 4 * m, 4), srd(sWS)))
        if m < 4: a('s_add_u32 s10, s10, 36864')
    a('s_branch L_FIN')

    a.label('L_roleC'); a.fence(4)
    a('''
    s_cmp_ge_u32 s3, 4
    s_cbranch_scc1 L_FIN
    s_lshl_b32 s10, s12, 4
    s_lshl_b32 s15, s3, 2
    s_add_u32 s10, s10, s15
    v_add_u32 v40, s10, v2
    v_lshlrev_b32 v44, 1, v40
    buffer_load_ushort v43, v44, %s, 0 offen
    v_lshlrev_b32 v40, 2, v40
    v_mul_u32_u24 v41, 2304, v3
    v_add_u32 v40, v40, v41
    v_mov_b32 v42, %d
    v_cmp_gt_u32 vcc, 8, v3
    v_cndmask_b32 v40, v42, v40, vcc
    v_cndmask_b32 v47, 0, v13, vcc
    s_mov_b32 s4, %d
    L_C_poll1:
    buffer_load_dword v24, v40, %s, s4 offen sc1
    s_waitcnt vmcnt(0)
    v_msad_u8 v25, v24, v47, 0
    v_cmp_ne_u32 vcc, 0, v25
    s_cbranch_vccz L_C_got1
    ''' % (srd(sX), OOB, YO, srd(sWS)))
    spin_guard('L_C_poll1')
    a.label('L_C_got1')
    for r in (8, 4, 2, 1):
        a('v_add_f32_dpp v24, v24, v24 row_ror:%d row_mask:0xf bank_mask:0xf' % r)
    a('''
    v_cvt_pk_bf16_f32 v24, v24, v24
    v_lshlrev_b32 v24, 16, v24
    v_lshlrev_b32 v43, 16, v43
    v_add_f32 v43, v43, v24
    v_cvt_pk_bf16_f32 v43, v43, v43
    v_lshlrev_b32 v43, 16, v43
    s_mul_i32 s4, s12, 4608
    s_lshl_b32 s15, s3, 4
    s_add_u32 s4, s4, s15
    s_add_u32 s4, s4, %d
    s_add_u32 s5, s4, 4096
    v_lshlrev_b32 v40, 6, v1
    v_cmp_gt_u32 vcc, 8, v1
    v_cndmask_b32 v41, v42, v40, vcc
    v_cndmask_b32 v47, 0, v13, vcc
    L_C_poll2:
    buffer_load_dwordx4 v[24:27], v40, %s, s4 offen sc1
    buffer_load_dwordx4 v[28:31], v41, %s, s5 offen sc1
    s_waitcnt vmcnt(0)
    v_msad_u8 v36, v24, v13, 0
    v_msad_u8 v37, v25, v13, 0
    v_msad_u8 v38, v28, v47, 0
    v_msad_u8 v36, v26, v13, v36
    v_msad_u8 v37, v27, v13, v37
    v_msad_u8 v38, v29, v47, v38
    v_msad_u8 v36, v30, v47, v36
    v_msad_u8 v37, v31, v47, v37
    v_or3_b32 v36, v36, v37, v38
    v_cmp_ne_u32 vcc, 0, v36
    s_cbranch_vccz L_C_got2
    ''' % (OUTP, srd(sWS), srd(sWS)))
    spin_guard('L_C_poll2')
    a.label('L_C_got2')
    stamp(4)
    for r in range(4):
        a('v_add_f32 v%d, v%d, v%d' % (24 + r, 24 + r, 28 + r))
    a('''
    v_permlane32_swap_b32 v24, v26
    v_permlane32_swap_b32 v25, v27
    v_add_f32 v24, v24, v26
    v_add_f32 v25, v25, v27
    v_permlane16_swap_b32 v24, v25
    v_add_f32 v24, v24, v25
    ''')
    for r in (8, 4, 2, 1):
        a('v_add_f32_dpp v24, v24, v24 row_ror:%d row_mask:0xf bank_mask:0xf' % r)
    a('''
    v_cvt_pk_bf16_f32 v24, v24, v24
    v_lshlrev_b32 v24, 16, v24
    v_add_f32 v24, v24, v43
    v_cvt_pk_bf16_f32 v24, v24, v24
    s_mov_b32 exec_lo, 0x00010001
    s_mov_b32 exec_hi, 0x00010001
    buffer_store_short v24, v44, %s, 0 offen
    s_add_u32 s4, s12, s3
    s_cmp_eq_u32 s4, 0
    s_cbranch_scc0 L_FIN
    s_mov_b64 exec, 1
    s_mov_b32 s4, %d
    buffer_store_dword v13, v4, %s, s4 offen sc1
    ''' % (srd(sOUT), EP, srd(sWS)))
    a.label('L_FIN')
    a('s_mov_b64 exec, -1')
    if cfg.dry:
        a('s_cmp_lg_u32 s%d, 0' % DRY); a('s_cbranch_scc1 L_after_dry')
    if cfg.stamps:
        a.fence(4)
        a('s_memrealtime s[4:5]')
        a('s_lshl_b32 s10, s2, 3'); a('s_add_u32 s10, s10, s3'); a('s_lshl_b32 s10, s10, 6'); a('s_add_u32 s10, s10, %d' % TS)
        a('s_waitcnt lgkmcnt(0)')
        for k in range(5):
            a('v_mov_b32 v%d, s%d' % (24 + k, 92 + 2 * k))
        a('v_mov_b32 v29, s4')
        a('s_getreg_b32 s4, hwreg(HW_REG_XCC_ID)'); a('s_and_b32 s4, s4, 15'); a('s_lshl_b32 s5, s11, 8'); a('s_or_b32 s4, s4, s5'); a('v_mov_b32 v30, s4')
        a('v_mov_b32 v31, s91')
        if cfg.prof:
            a('s_lshl_b32 s15, s2, 3'); a('s_add_u32 s15, s15, s3'); a('s_lshl_b32 s15, s15, 8'); a('s_add_u32 s15, s15, %d' % PROF)
            a('v_lshlrev_b32 v40, 2, v1'); a('buffer_store_dword v250, v40, %s, s15 offen' % srd(sWS))
        a('v_mov_b32 v40, 0'); a('s_mov_b64 exec, 1')
        a('buffer_store_dwordx4 v[24:27], v40, %s, s10 offen' % srd(sWS))
        a('buffer_store_dwordx4 v[28:31], v40, %s, s10 offen offset:16' % srd(sWS))
        for k in range(8):
            a('v_mov_b32 v%d, s%d' % (32 + k, SP[5 + k]))
        a('buffer_store_dwordx4 v[32:35], v40, %s, s10 offen offset:32' % srd(sWS))
        a('buffer_store_dwordx4 v[36:39], v40, %s, s10 offen offset:48' % srd(sWS))
    a.label('L_END')
    a('s_endpgm')
    a.raw('''.section .rodata,"a"
.p2align 6
.amdhsa_kernel %s
  .amdhsa_next_free_vgpr 256
  .amdhsa_next_free_sgpr 102
  .amdhsa_accum_offset 256
  .amdhsa_group_segment_fixed_size 0
  .amdhsa_kernarg_size 96
  .amdhsa_user_sgpr_count 2
  .amdhsa_user_sgpr_kernarg_segment_ptr 1
  .amdhsa_system_sgpr_workgroup_id_x 1
.end_amdhsa_kernel''' % KN)
    return a.text()

if __name__ == '__main__':
    out = sys.argv[1]
    kw = {}
    for arg in sys.argv[2:]:
        k, v = arg.split('=')
        kw[k] = eval(v)
    open(out, 'w').write(gen(Cfg(**kw)))
```

```python
import sys, struct
from asmlib import Asm

KN = 'sequential_preLN__mha_block_cached__glu_gated_geglu__decode_kernel'

def f32(x):
    return '0x%08x' % struct.unpack('<I', struct.pack('<f', x))[0]

class Cfg:
    nt = True
    stamps = False
    spin_max = 2000000
    S = 96
    SB = 68
    RY = 1
    early_d = False
    PL = 'sc1'
    PS = 'sc1'
    NPQ = 1
    NPC = 1
    CS = 256
    fake = 0
    SK = 1
    touch = False
    static_d = True
    NP = 1
    stag = 4
    stagq = 12
    wq_first = True
    prof = False
    pub_first = True
    force_b = 5
    early_b = True
    dry = False
    def __init__(self, **kw):
        for k, v in kw.items():
            assert hasattr(self, k), k
            setattr(self, k, v)

PART = 0
ML = 131072
YO = 163840
OUTP = 1572864
TS = 524288
QX = 655360
EP = 786432
CT = 2 << 20
WS_BYTES = 8 << 20
PROF = 1 << 20
OOB = 0x40000000
QB = 4096; WC = 0; WML = 4352; OB = 4608; ST = 5888; HH = 5952; CTR = 6080; WCTR = 6084; ARR = 6088; FLAG = 6092
BB = 6144; GP = 10240; CP = 14848
WB = 20480
LDS_BYTES = WB + 73728
LOG2E = 1.4426950408889634
SCALE = 128 ** -0.5

class Asm2(Asm):
    nbar = 0
    dry = True
    def _emit(self, t):
        if t.endswith(' sc1') and t.startswith('buffer_load'): t = t[:-4] + ' ' + self.PL
        if t.endswith(' sc1') and t.startswith('buffer_store'): t = t[:-4] + ' ' + self.PS
        if t.startswith('STAMP'):
            k = int(t[5:])
            if self.stamps: Asm._emit(self, 's_memrealtime s[%d:%d]' % (self.SP[k], self.SP[k] + 1))
            return
        if t == 'BAR':
            if not self.dry:
                return Asm._emit(self, 's_barrier')
            self.nbar += 1
            Asm._emit(self, 's_cmp_lg_u32 s36, 0')
            Asm._emit(self, 's_cbranch_scc1 L_nb%d' % self.nbar)
            Asm._emit(self, 's_barrier')
            self.label('L_nb%d' % self.nbar)
            return
        Asm._emit(self, t)

def gen(cfg):
    a = Asm2()
    a.dry = cfg.dry
    a.stamps = cfg.stamps
    a.PL = cfg.PL; a.PS = cfg.PS
    a.SP = [92, 94, 96, 98, 100, 16, 18, 20, 22, 24, 26, 28, 30]
    hdr = open('sequential_preLN__mha_block_cached__glu_gated_geglu__decode.s.ref').read().split('\n')
    for l in hdr:
        if l.startswith('; @launch'): break
        a.raw(l)
    a.raw('; @launch grid=(256,1,1) block=(512,1,1) lds=%d' % LDS_BYTES)
    a.raw('.amdgcn_target "amdgcn-amd-amdhsa--gfx950"\n.text\n.globl %s\n.p2align 8\n.type %s,@function' % (KN, KN))
    a.label(KN)
    NT = ' nt' if cfg.nt else ''
    LANE, G, I, L16 = 1, 2, 3, 4
    Q = 5
    VD0, VD1, VG0, ONE = 9, 10, 11, 12
    ACC = 14
    M, L, VTAG = 22, 23, 13
    T = 24
    KV = 48
    def Kr(s): return KV + 32 * s
    def Vr(s): return KV + 32 * s + 16
    WQR = 112
    XR = 184
    XS = 194
    XN = 204
    MK = 40
    sK, sV, sX, sWQ, sWO, sWG, sWU, sWS, sOUT, sDBG, sWD = 40, 44, 48, 52, 56, 60, 64, 68, 72, 76, 80
    sBASE, TAG, T0, sHAVE = 5, 37, 38, 39
    sWM, sNG, sN, sMASK, sRET, sC, sG, sC0, sCOFF, sNGI = 32, 33, 34, 35, 6, 7, 8, 78, 79, 36
    PT = 42
    GU = 176
    sWB = 1
    POOL0 = 8 * cfg.S
    DUMMY = 200
    def mk_tag():
        a('''
        s_waitcnt lgkmcnt(0)
        s_and_b32 s77, s76, 0xff
        s_add_u32 s%(TAG)d, s77, 1
        s_cmp_eq_u32 s77, 0xff
        s_cselect_b32 s%(TAG)d, 1, s%(TAG)d
        v_mov_b32 v%(VTAG)d, s%(TAG)d
        s_lshl_b32 s%(C0)d, s%(C0)d, %(SK)d
        s_add_u32 s%(C0)d, s%(C0)d, s7
        s_sub_u32 s%(C0)d, s%(C0)d, %(POOL0)d
        ''' % dict(TAG=TAG, VTAG=VTAG, C0=sC0, POOL0=POOL0, SK=cfg.SK))
    def tagw(v):
        a('v_and_or_b32 v%d, v%d, s%d, v%d' % (v, v, sMASK, VTAG))
    def chk(regs, accs, ref='v13'):
        for k, r in enumerate(regs):
            ac = accs[k % len(accs)]
            a('v_msad_u8 v%d, v%d, %s, %s' % (ac, r, ref, '0' if k < len(accs) else 'v%d' % ac))
        if len(accs) == 2: a('v_or_b32 v%d, v%d, v%d' % (accs[0], accs[0], accs[1]))
        if len(accs) == 3: a('v_or3_b32 v%d, v%d, v%d, v%d' % (accs[0], accs[0], accs[1], accs[2]))
        a('v_cmp_ne_u32 vcc, 0, v%d' % accs[0])
    def srd(s): return 's[%d:%d]' % (s, s + 3)
    def vr(b, n): return 'v[%d:%d]' % (b, b + n - 1)
    SP = [92, 94, 96, 98, 100, 16, 18, 20, 22, 24, 26, 28, 30]
    def stamp(k):
        if cfg.stamps:
            a('s_memrealtime s[%d:%d]' % (SP[k], SP[k] + 1))
    def allreduce(v, t, op='v_add_f32'):
        for r in (8, 4, 2, 1):
            a('%s_dpp v%d, v%d, v%d row_ror:%d row_mask:0xf bank_mask:0xf' % (op, v, v, v, r))
        a('v_mov_b32 v%d, v%d' % (t, v)); a('v_permlane16_swap_b32 v%d, v%d' % (v, t)); a('%s v%d, v%d, v%d' % (op, v, v, t))
        a('v_mov_b32 v%d, v%d' % (t, v)); a('v_permlane32_swap_b32 v%d, v%d' % (v, t)); a('%s v%d, v%d, v%d' % (op, v, v, t))
    def load_tile(s, which, so='s9'):
        base = Kr(s) if which == 'K' else Vr(s)
        for c in range(4):
            a('buffer_load_dwordx4 %s, v%d, %s, %s offen offset:%d%s' % (vr(base + 4 * c, 4), L16, srd(sK if which == 'K' else sV), so, c * 1024, NT))
    def mk_srd(s, lo, nbytes):
        a('s_mov_b32 s%d, s%d' % (s, lo)); a('s_mov_b32 s%d, s%d' % (s + 1, lo + 1))
        a('s_mov_b32 s%d, %d' % (s + 2, nbytes)); a('s_mov_b32 s%d, 0x20000' % (s + 3))
    def ln_finish(mean, var, mb, sd, rc, t):
        a('v_cvt_pk_bf16_f32 v%d, v%d, v%d' % (t, mean, var))
        a('v_lshlrev_b32 v%d, 16, v%d' % (mb, t))
        a('v_and_b32 v%d, 0xffff0000, v%d' % (t, t))
        a('v_add_f32 v%d, %s, v%d' % (t, f32(1e-5), t))
        a('v_cvt_pk_bf16_f32 v%d, v%d, v%d' % (t, t, t))
        a('v_lshlrev_b32 v%d, 16, v%d' % (t, t))
        a('v_sqrt_f32 v%d, v%d' % (t, t))
        a('v_cvt_pk_bf16_f32 v%d, v%d, v%d' % (t, t, t))
        a('v_lshlrev_b32 v%d, 16, v%d' % (sd, t))
        a('v_rcp_f32 v%d, v%d' % (rc, sd))
    def spin_guard(lbl):
        a('s_add_u32 s91, s91, 1'); a('s_cmp_gt_u32 s91, %d' % cfg.spin_max); a('s_cbranch_scc1 L_END'); a('s_branch %s' % lbl)

    def ppoll(name, sets, issue, check, nld, got, stag):
        n = len(sets)
        for i, b in enumerate(sets):
            issue(b)
            if i < n - 1 and stag: a('s_sleep %d' % stag)
        a.label('L_%s_poll' % name)
        for i, b in enumerate(sets):
            a('s_waitcnt vmcnt(%d)' % (nld * (n - 1)))
            check(b)
            a('s_cbranch_vccz L_%s_got%d' % (name, i))
            issue(b)
        spin_guard('L_%s_poll' % name)
        for i, b in enumerate(sets):
            a.label('L_%s_got%d' % (name, i))
            got(b)
            if i < n - 1: a('s_branch L_%s_go' % name)
        a.label('L_%s_go' % name)

    a('''
    s_cmp_ge_u32 s2, 256
    s_cbranch_scc1 L_END
    s_load_dwordx16 s[16:31], s[0:1], 0
    s_load_dwordx8 s[32:39], s[0:1], 64
    ''')
    stamp(0)
    a('''
    v_add_u32 v0, 448, v0
    v_and_b32 v1, 63, v0
    v_and_b32 v0, 511, v0
    v_lshrrev_b32 v24, 6, v0
    v_lshlrev_b32 v4, 4, v1
    v_readfirstlane_b32 s3, v24
    v_mov_b32 v24, 29
    v_mov_b32 v25, 0
    v_mov_b32 v26, 0
    v_mov_b32 v27, 0
    ds_write_b128 v25, v[24:27] offset:%(CTR)d
    v_lshrrev_b32 v2, 4, v1
    v_and_b32 v3, 15, v1
    s_lshr_b32 s4, s2, 3
    s_and_b32 s15, s2, 7
    s_lshl_b32 s6, s4, 22
    s_add_u32 s10, s2, s4
    s_and_b32 s10, s10, 7
    s_cmp_lt_u32 s4, 8
    s_cselect_b32 s7, 3, 2
    s_cmp_lt_u32 s10, s7
    s_cselect_b32 s14, %(D)d, 0
    s_sub_u32 s14, %(S)d, s14
    s_min_u32 s8, s10, s7
    s_mul_i32 s8, s8, %(D)d
    s_mul_i32 s%(BASE)d, s10, %(S)d
    s_sub_u32 s%(BASE)d, s%(BASE)d, s8
    s_mul_i32 s7, s7, %(D)d
    s_mov_b32 s42, 0x400000
    s_mov_b32 s43, 0x20000
    s_mov_b32 s46, 0x400000
    s_mov_b32 s47, 0x20000
    s_add_u32 s9, s3, s%(BASE)d
    s_lshl_b32 s9, s9, 12
    s_and_b32 s8, s3, %(SM)d
    s_lshl_b32 s%(COFF)d, s4, %(SK)d
    s_add_u32 s%(COFF)d, s%(COFF)d, s8
    s_sub_u32 s7, s7, s8
    s_mul_i32 s%(COFF)d, s%(COFF)d, %(CS)d
    s_add_u32 s%(COFF)d, s%(COFF)d, %(CT)d
    s_waitcnt lgkmcnt(0)
    s_load_dword s76, s[38:39], %(EP)d
    s_load_dword s%(C0)d, s[38:39], s%(COFF)d
    s_add_u32 s40, s18, s6
    s_addc_u32 s41, s19, 0
    s_add_u32 s44, s20, s6
    s_addc_u32 s45, s21, 0
    s_cmp_lt_u32 s3, 7
    s_cbranch_scc0 L_nofirst
    ''' % dict(CTR=CTR, OB=OB, BASE=sBASE, S=cfg.S, SB=cfg.SB, D=cfg.S - cfg.SB, COFF=sCOFF, CT=CT, EP=EP, C0=sC0, CS=cfg.CS, SM=(1 << cfg.SK) - 1, SK=cfg.SK))
    seq = [(b, wh) for b in (1, 2, 3, 0) for wh in 'KV']
    if cfg.wq_first: a('s_barrier')
    for j in range(2):
        s, wh = seq[j]
        load_tile(s, wh)
        if wh == 'V': a('s_add_u32 s9, s9, %d' % (7 * 4096))
    a.label('L_nofirst')
    mk_srd(sX, 16, 1152)
    mk_srd(sWQ, 22, 576 * 4096 * 2)
    a('s_cmp_eq_u32 s3, 7'); a('s_cbranch_scc0 L_notq')
    a('s_setprio 3')
    a('v_lshlrev_b32 v24, 1, v1')
    for k in range(9):
        a('buffer_load_ushort v%d, v24, %s, 0 offen offset:%d' % (XS + k, srd(sX), k * 128))
    a('s_mul_i32 s10, s15, 144')
    a('v_mul_u32_u24 v25, 36, v2')
    a('buffer_load_dwordx4 %s, v25, %s, s10 offen' % (vr(XR, 4), srd(sX)))
    a('buffer_load_dwordx4 %s, v25, %s, s10 offen offset:16' % (vr(XR + 4, 4), srd(sX)))
    a('buffer_load_dword v%d, v25, %s, s10 offen offset:32' % (XR + 8, srd(sX)))
    a('''
    v_mul_u32_u24 v24, %d, v2
    v_lshl_add_u32 v24, v3, 4, v24
    s_mul_i32 s10, s15, %d
    s_lshl_b32 s15, s4, 8
    s_add_u32 s10, s10, s15
    ''' % (18 * 8192, 72 * 8192))
    for t in range(18):
        a('buffer_load_dwordx4 %s, v24, %s, s10 offen%s' % (vr(WQR + 4 * t, 4), srd(sWQ), NT))
        if t < 17: a('s_add_u32 s10, s10, 8192')
    if cfg.wq_first: a('s_barrier')
    a.label('L_notq')
    mk_srd(sWS, 38, WS_BYTES)
    mk_srd(sWO, 24, 4096 * 576 * 2)
    mk_srd(sWG, 28, 576 * 4608 * 2)
    mk_srd(sWU, 30, 576 * 4608 * 2)
    mk_srd(sWD, 32, 4608 * 576 * 2)
    mk_srd(sOUT, 34, 1152)
    a('''
    s_add_u32 s10, s2, s4
    s_and_b32 s10, s10, 7
    s_mov_b32 s11, 0
    s_mov_b32 s%(NG)d, 18
    s_mov_b32 s0, %(FB)d
    s_cmp_lt_u32 s4, 8
    s_cbranch_scc0 L_role_y
    s_mul_i32 s12, s4, 3
    s_add_u32 s12, s12, s10
    s_cmp_lt_u32 s10, 3
    s_cbranch_scc1 L_role_done
    s_mov_b32 s11, 2
    s_mov_b32 s%(NG)d, 0
    s_mul_i32 s12, s4, 5
    s_add_u32 s12, s12, s10
    s_sub_u32 s12, s12, 3
    s_cmp_lt_u32 s12, 36
    s_cbranch_scc1 L_role_done
    s_mov_b32 s11, 3
    s_branch L_role_done
    L_role_y:
    s_lshl_b32 s12, s4, 1
    s_add_u32 s12, s12, s10
    s_add_u32 s12, s12, 8
    s_cmp_lt_u32 s10, 2
    s_cbranch_scc1 L_role_done
    s_mov_b32 s11, 1
    s_mov_b32 s%(NG)d, 16
    s_lshr_b32 s13, s4, 3
    s_mul_i32 s13, s13, 3
    s_add_u32 s13, s13, s10
    s_sub_u32 s13, s13, 5
    s_and_b32 s12, s2, 7
    s_cmp_lt_u32 s10, 5
    s_cbranch_scc1 L_role_done
    s_mov_b32 s11, 3
    s_mov_b32 s%(NG)d, 0
    L_role_done:
    s_mov_b32 s88, %(l2e)s
    s_mov_b32 s89, %(sc)s
    s_mov_b32 s91, 0
    s_mov_b32 s90, 0
    s_mov_b32 s%(HAVE)d, 0
    s_mov_b32 s%(G)d, 0
    s_mov_b32 s%(NGI)d, 0
    s_cmp_eq_u32 s11, 0
    s_cselect_b32 s1, 0, 5
    s_mov_b32 s%(MASK)d, 0xffffff00
    ''' % dict(NG=sNG, l2e=f32(LOG2E), sc=f32(SCALE), MASK=sMASK, HAVE=sHAVE, G=sG, NGI=sNGI, FB=cfg.force_b))
    mk_tag()
    if cfg.fake:
        a('s_and_b32 s%d, s2, 7' % sC0); a('s_lshl_b32 s%d, s%d, 3' % (sC0, sC0)); a('s_add_u32 s%d, s%d, s3' % (sC0, sC0))
        a('s_sub_u32 s%d, s%d, s7' % (sC0, sC0)); a('s_add_u32 s%d, s%d, %d' % (sC0, sC0, POOL0))
    a('''
    s_barrier
    s_cmp_eq_u32 s3, 7
    s_cbranch_scc0 L_pace
    ''')
    a.label('L_qwave')
    a('''
    v_and_b32 v24, 1, v1
    v_mov_b32 v25, 0xffff
    v_mov_b32 v26, 0xffff0000
    v_cmp_eq_u32 vcc, 1, v24
    v_cndmask_b32 v25, v25, v26, vcc
    v_bfe_u32 v24, v1, 1, 2
    ''')
    for r in range(4):
        a('v_cmp_eq_u32 vcc, %d, v24' % r)
        a('v_cndmask_b32 v%d, 0, v25, vcc' % (MK + r))
    a('s_waitcnt vmcnt(%d)' % (3 + 18))
    stamp(5)
    for k in range(9):
        a('v_lshlrev_b32 v%d, 16, v%d' % (XS + k, XS + k))
    a('v_add_f32 v24, v%d, v%d' % (XS, XS + 1))
    for k in range(2, 9):
        a('v_add_f32 v24, v24, v%d' % (XS + k))
    allreduce(24, 25)
    a('v_mul_f32 v24, %s, v24' % f32(1.0 / 576))
    a('v_sub_f32 v26, v%d, v24' % XS); a('v_mul_f32 v27, v26, v26')
    for k in range(1, 9):
        a('v_sub_f32 v26, v%d, v24' % (XS + k)); a('v_fmac_f32 v27, v26, v26')
    allreduce(27, 25)
    a('v_mul_f32 v27, %s, v27' % f32(1.0 / 576))
    ln_finish(24, 27, 28, 29, 30, 25)
    a('s_waitcnt vmcnt(%d)' % 18)
    for k in range(9):
        a('v_lshlrev_b32 v32, 16, v%d' % (XR + k))
        a('v_and_b32 v33, 0xffff0000, v%d' % (XR + k))
        a('v_sub_f32 v32, v32, v28'); a('v_sub_f32 v33, v33, v28')
        a('v_cvt_pk_bf16_f32 v34, v32, v33')
        a('v_lshlrev_b32 v32, 16, v34'); a('v_and_b32 v33, 0xffff0000, v34')
        a('v_mul_f32 v34, v32, v30'); a('v_mul_f32 v35, v33, v30')
        a('v_fma_f32 v32, -v34, v29, v32'); a('v_fma_f32 v33, -v35, v29, v33')
        a('v_fmac_f32 v34, v32, v30'); a('v_fmac_f32 v35, v33, v30')
        a('v_cvt_pk_bf16_f32 v%d, v34, v34' % (XN + 2 * k)); a('v_cvt_pk_bf16_f32 v%d, v35, v35' % (XN + 2 * k + 1))
    a('''
    v_lshl_add_u32 v44, v2, 3, v3
    v_lshlrev_b32 v44, 4, v44
    v_mov_b32 v45, %d
    v_cmp_gt_u32 vcc, 8, v3
    v_cndmask_b32 v44, v45, v44, vcc
    s_lshl_b32 s10, s2, 9
    s_add_u32 s10, s10, %d
    ''' % (OOB, QX))
    stamp(6)
    a('s_waitcnt vmcnt(0)')
    stamp(7)
    for t in range(18):
        b = 32 + 4 * (t & 1)
        for r in range(4):
            a('v_and_b32 v%d, v%d, v%d' % (b + r, XN + t, MK + r))
        a('v_mfma_f32_16x16x32_bf16 v[24:27], %s, %s, %s' % (vr(WQR + 4 * t, 4), vr(b, 4), '0' if t == 0 else 'v[24:27]'))
    for r in range(4): tagw(24 + r)
    a('''
    buffer_store_dwordx4 v[24:27], v44, %(WS)s, s10 offen sc1
    s_lshl_b32 s10, s4, 12
    s_add_u32 s10, s10, %(QX)d
    ''' % dict(WS=srd(sWS), QX=QX))
    stamp(8)
    a('''
    v_bfe_u32 v44, v1, 3, 2
    v_and_b32 v45, 7, v1
    v_lshl_add_u32 v44, v44, 5, v45
    v_lshlrev_b32 v44, 1, v44
    v_mov_b32 v45, 0
    v_mov_b32 v46, 1
    ''')
    def q_issue(b):
        for k in range(4):
            a('buffer_load_dwordx4 %s, v4, %s, s10 offen offset:%d sc1' % (vr(b + 4 * k, 4), srd(sWS), 1024 * k))
    def q_got(b):
        for r in range(0, 4, 2):
            a('v_pk_add_f32 %s, %s, %s' % (vr(24 + r, 2), vr(b + r, 2), vr(b + 4 + r, 2)))
            a('v_pk_add_f32 %s, %s, %s' % (vr(32 + r, 2), vr(b + 8 + r, 2), vr(b + 12 + r, 2)))
    ppoll('q', [112 + 16 * i for i in range(cfg.NPQ)], q_issue, lambda b: chk(range(b, b + 16), [40, 41, 42]), 4, q_got, cfg.stagq)
    stamp(9)
    for r in range(4):
        a('v_add_f32 v%d, v%d, v%d' % (24 + r, 24 + r, 32 + r))
    for r in range(4):
        a('v_mov_b32 v%d, v%d' % (28 + r, 24 + r))
    for r in range(4):
        a('v_permlane32_swap_b32 v%d, v%d' % (24 + r, 28 + r))
    for r in range(4):
        a('v_add_f32 v%d, v%d, v%d' % (24 + r, 24 + r, 28 + r))
    a('v_cvt_pk_bf16_f32 v24, v24, v25'); a('v_cvt_pk_bf16_f32 v26, v26, v27')
    a('''
    ds_write_b16 v44, v24 offset:%d
    ds_write_b16_d16_hi v44, v24 offset:%d
    ds_write_b16 v44, v26 offset:%d
    ds_write_b16_d16_hi v44, v26 offset:%d
    s_waitcnt lgkmcnt(0)
    ds_write_b32 v45, v46 offset:%d
    ''' % (QB, QB + 16, QB + 32, QB + 48, FLAG))
    stamp(10)
    a('s_setprio 0')
    a('s_add_u32 s%d, s%d, 28' % (T0, sBASE)); a('s_lshl_b32 s9, s%d, 12' % T0)
    load_tile(0, 'K'); load_tile(0, 'V')
    a('s_branch L_wait_q')

    a.label('L_pace')
    for j in range(2, 8):
        s, wh = seq[j]
        a('s_waitcnt vmcnt(4)')
        load_tile(s, wh)
        if wh == 'V' and j < 7: a('s_add_u32 s9, s9, %d' % (7 * 4096))
    a('s_mov_b32 s%d, 0' % T0)
    a('s_mov_b32 s90, 1')
    if cfg.touch:
        a('''
        s_cmp_eq_u32 s3, 0
        s_cbranch_scc0 L_wait_q
        v_lshlrev_b32 v24, 15, v1
        buffer_load_dword v251, v24, %(WS)s, 0 offen sc1
        s_mul_i32 s10, s12, 73728
        v_mul_u32_u24 v24, 8188, v3
        buffer_load_dword v252, v24, %(WD)s, s10 offen
        buffer_load_dword v253, v24, %(OUT)s, 0 offen
        ''' % dict(WS=srd(sWS), WD=srd(sWD), OUT=srd(sOUT)))
    a.label('L_wait_q')
    a('''
    v_lshrrev_b32 v34, 3, v1
    v_mul_u32_u24 v34, 1152, v34
    v_and_b32 v35, 1, v2
    v_lshlrev_b32 v35, 1, v35
    v_and_b32 v32, 7, v1
    v_xor_b32 v32, v32, v35
    v_xor_b32 v33, 4, v32
    v_lshl_add_u32 v%(VD0)d, v32, 4, v34
    v_lshl_add_u32 v%(VD1)d, v33, 4, v34
    v_lshrrev_b32 v34, 3, v1
    v_mul_u32_u24 v34, 9216, v34
    v_and_b32 v36, 7, v1
    v_lshl_add_u32 v%(VG0)d, v36, 4, v34
    v_mov_b32 v%(ONE)d, 1
    v_mov_b32 v40, 0
    v_lshlrev_b32 v41, 4, v3
    ''' % dict(VD0=VD0, VD1=VD1, VG0=VG0, ONE=ONE))
    for e in range(8):
        a('v_mov_b32 v%d, 0' % (ACC + e))
    a('v_mov_b32 v%d, 0xff800000' % M)
    a('v_mov_b32 v%d, 0' % L)
    a('''
    L_qw:
    ds_read_b32 v42, v40 offset:%(FLAG)d
    ds_read_b128 v[24:27], v41 offset:%(QB)d
    s_waitcnt lgkmcnt(0)
    v_readfirstlane_b32 s10, v42
    s_mov_b32 s%(RET)d, 0
    s_cmp_lt_u32 s1, s0
    s_cbranch_scc1 L_qw_gu
    s_cmp_lt_u32 s%(G)d, s%(NG)d
    %(LATE)s
    s_cbranch_scc1 L_qw_grp
    s_cmp_eq_u32 s10, 1
    s_cbranch_scc1 L_fl_got
    ''' % dict(FLAG=FLAG, QB=QB, G=sG, NG=sNG, RET=sRET, LATE='' if cfg.early_d else 's_cselect_b32 s15, s11, 0\n s_cmp_eq_u32 s15, 1'))
    if cfg.early_b:
        a('s_cmp_lt_u32 s1, 5'); a('s_cbranch_scc1 L_qw_gu')
    a('''
    s_branch L_qw_idle
    L_qw_gu:
    s_add_u32 s%(NGI)d, s%(NGI)d, 1
    s_waitcnt vmcnt(4)
    s_branch L_gu
    L_qw_grp:
    s_mov_b64 exec, 1
    s_waitcnt vmcnt(4)
    ds_add_rtn_u32 v42, v4, v%(ONE)d offset:%(WCTR)d
    s_mov_b64 exec, -1
    s_waitcnt lgkmcnt(0)
    v_readfirstlane_b32 s%(G)d, v42
    s_cmp_ge_u32 s%(G)d, s%(NG)d
    s_cbranch_scc1 L_qw
    s_add_u32 s%(NGI)d, s%(NGI)d, 1
    s_branch L_dma
    L_qw_idle:
    s_sleep 1
    ''' % dict(ONE=ONE, WCTR=WCTR, G=sG, NG=sNG, NGI=sNGI))
    spin_guard('L_qw')
    a.label('L_fl_got')
    for r in range(4):
        a('v_mov_b32 v%d, v%d' % (Q + r, 24 + r))
    stamp(1)
    if cfg.prof: a('s_mov_b32 s77, 0'); a('v_mov_b32 v250, 0')
    a('''
    s_cmp_ge_u32 s%d, 2
    s_cbranch_scc1 L_landed
    s_waitcnt vmcnt(0)
    L_landed:
    s_cmp_eq_u32 s90, 0
    s_cbranch_scc1 L_loop
    s_mov_b64 exec, 1
    s_cmp_eq_u32 s90, 0
    s_branch L_loop_nw
    ''' % sNGI)

    S = T
    def qk(k0):
        for e in range(4):
            for c in range(4):
                if e == 0:
                    a('v_dot2_f32_bf16 v%d, v%d, v%d, 0' % (S + c, k0 + 4 * c, Q))
                else:
                    a('v_dot2c_f32_bf16 v%d, v%d, v%d' % (S + c, k0 + 4 * c + e, Q + e))
    def soft():
        for r in (8, 4, 2, 1):
            for c in range(4):
                a('v_add_f32_dpp v%d, v%d, v%d row_ror:%d row_mask:0xf bank_mask:0xf' % (S + c, S + c, S + c, r))
        a('v_cvt_pk_bf16_f32 v28, v24, v25'); a('v_cvt_pk_bf16_f32 v29, v26, v27')
        a('v_lshlrev_b32 v24, 16, v28'); a('v_and_b32 v25, 0xffff0000, v28')
        a('v_lshlrev_b32 v26, 16, v29'); a('v_and_b32 v27, 0xffff0000, v29')
        for c in range(4):
            a('v_mul_f32 v%d, s89, v%d' % (S + c, S + c))
        a('v_cvt_pk_bf16_f32 v28, v24, v25'); a('v_cvt_pk_bf16_f32 v29, v26, v27')
        a('v_lshlrev_b32 v24, 16, v28'); a('v_and_b32 v25, 0xffff0000, v28')
        a('v_lshlrev_b32 v26, 16, v29'); a('v_and_b32 v27, 0xffff0000, v29')
        a('v_max3_f32 v30, v24, v25, v%d' % M)
        a('v_max3_f32 v30, v26, v27, v30')
        a('v_sub_f32 v31, v%d, v30' % M)
        for c in range(4):
            a('v_sub_f32 v%d, v%d, v30' % (S + c, S + c))
        a('v_mul_f32 v31, s88, v31')
        for c in range(4):
            a('v_mul_f32 v%d, s88, v%d' % (S + c, S + c))
        a('v_exp_f32 v31, v31')
        for c in range(4):
            a('v_exp_f32 v%d, v%d' % (S + c, S + c))
        a('v_mov_b32 v%d, v30' % M)
        for e in range(8):
            a('v_mul_f32 v%d, v%d, v31' % (ACC + e, ACC + e))
        a('v_fma_f32 v%d, v%d, v31, v24' % (L, L))
        a('v_add_f32 v30, v25, v26')
        a('v_add_f32 v%d, v%d, v27' % (L, L))
        for c in range(4):
            a('v_cvt_pk_bf16_f32 v%d, v%d, 0' % (32 + 2 * c, S + c))
            a('v_cvt_pk_bf16_f32 v%d, 0, v%d' % (33 + 2 * c, S + c))
        a('v_add_f32 v%d, v%d, v30' % (L, L))
    def pv(v0_):
        for c in range(4):
            for e in range(4):
                a('v_dot2c_f32_bf16 v%d, v%d, v%d' % (ACC + 2 * e, v0_ + 4 * c + e, 32 + 2 * c))
                a('v_dot2c_f32_bf16 v%d, v%d, v%d' % (ACC + 2 * e + 1, v0_ + 4 * c + e, 33 + 2 * c))
        if cfg.prof:
            a('s_memrealtime s[84:85]'); a('s_waitcnt lgkmcnt(0)'); a('s_mov_b32 m0, s77'); a('v_writelane_b32 v250, s84, m0'); a('s_add_u32 s77, s77, 1')
    a.label('L_loop')
    a('''
    s_mov_b64 exec, 1
    s_bitcmp1_b32 s%(T)d, 11
    s_waitcnt vmcnt(4)
    L_loop_nw:
    ds_add_rtn_u32 v40, v4, v%(ONE)d offset:%(CTR)d
    v_readfirstlane_b32 s10, v%(PT)d
    s_mov_b64 exec, -1
    s_cbranch_scc1 L_skipK
    ''' % dict(T=T0, ONE=ONE, CTR=CTR, PT=PT))
    qk(Kr(0))
    a('''
    L_skipK:
    s_cmp_eq_u32 s90, 0
    s_cselect_b32 s%(WM)d, 2, 0
    s_waitcnt lgkmcnt(0)
    v_readfirstlane_b32 s%(C)d, v40
    s_add_u32 s%(N)d, s%(C)d, s%(BASE)d
    s_cmp_lt_u32 s%(C)d, s14
    s_cbranch_scc1 L_st
    %(POOLCODE)s
    L_st:
    s_lshl_b32 s9, s%(N)d, 12
    ''' % dict(WM=sWM, C=sC, N=sN, BASE=sBASE, S=cfg.S, C0=sC0, POOL0=POOL0, HAVE=sHAVE, SK=cfg.SK, POOLCODE=(('''
    s_lshl_b32 s10, s10, %(SK)d
    s_sub_u32 s%(N)d, s10, s%(C0)d
    s_cmp_eq_u32 s%(HAVE)d, 0
    s_cselect_b32 s%(N)d, 2048, s%(N)d
    s_mov_b32 s%(HAVE)d, 1
    s_bitcmp1_b32 s%(N)d, 10
    s_cselect_b32 s%(WM)d, 2, 1
    ''' if not cfg.fake else '''
    s_mov_b32 s%(N)d, s%(C0)d
    s_add_u32 s%(C0)d, s%(C0)d, 64
    s_bitcmp1_b32 s%(N)d, 10
    s_cselect_b32 s%(WM)d, 2, %(FW)d
    ''') % dict(WM=sWM, N=sN, C0=sC0, HAVE=sHAVE, SK=cfg.SK, FW=cfg.fake))))
    load_tile(0, 'K')
    a('''
    s_cmp_eq_u32 s%(WM)d, 1
    s_cbranch_scc0 L_noat
    v_mov_b32 v%(PT)d, 1
    s_mov_b64 exec, 1
    buffer_atomic_add v%(PT)d, v4, %(WS)s, s%(COFF)d offen sc0 sc1
    s_mov_b64 exec, -1
    L_noat:
    s_bitcmp1_b32 s%(T)d, 11
    s_cbranch_scc1 L_skipV
    ''' % dict(WM=sWM, PT=PT, WS=srd(sWS), COFF=sCOFF, T=T0))
    soft()
    a('''
    s_cmp_eq_u32 s%(WM)d, 0
    s_cbranch_scc1 L_vw
    s_cmp_eq_u32 s%(WM)d, 1
    s_waitcnt vmcnt(5)
    s_cbranch_scc1 L_vw
    s_waitcnt vmcnt(4)
    L_vw:
    ''' % dict(WM=sWM))
    pv(Vr(0))
    a('''
    L_skipV:
    s_bitcmp1_b32 s%(N)d, 10
    s_cbranch_scc1 L_tail
    s_mov_b32 s%(T)d, s%(N)d
    ''' % dict(T=T0, N=sN))
    load_tile(0, 'V')
    a('s_cmp_eq_u32 s90, 0'); a('s_cbranch_scc1 L_loop')
    a('s_mov_b32 s90, 0')
    for s in range(1, 4):
        qk(Kr(s)); soft(); pv(Vr(s))
    a('s_branch L_loop')
    a('''
    L_gu:
    s_mul_i32 s10, s3, 9
    s_lshl_b32 s15, s1, 1
    s_add_u32 s10, s10, s15
    s_mul_i32 s10, s10, 73728
    s_lshl_b32 s15, s12, 7
    s_add_u32 s10, s10, s15
    s_add_u32 s15, s10, 73728
    s_add_u32 s1, s1, 1
    ''')
    for blk in range(5):
        if blk < 4:
            a('s_cmp_eq_u32 s1, %d' % (blk + 1)); a('s_cbranch_scc0 L_gu%d' % (blk + 1))
        for tt in range(2 if blk < 4 else 1):
            t = 2 * blk + tt
            a('buffer_load_dwordx4 %s, v%d, %s, %s offen%s' % (vr(GU + 8 * t, 4), VG0, srd(sWG), ('s10', 's15')[tt], NT))
            a('buffer_load_dwordx4 %s, v%d, %s, %s offen%s' % (vr(GU + 8 * t + 4, 4), VG0, srd(sWU), ('s10', 's15')[tt], NT))
        a('s_branch L_dg_next')
        if blk < 4: a.label('L_gu%d' % (blk + 1))
    a('''
    L_dma:
    s_lshl_b32 s15, s%(G)d, 12
    s_add_u32 s15, s15, %(WB)d
    s_mov_b32 s87, 0x20000
    s_cmp_eq_u32 s11, 1
    s_cbranch_scc0 L_dg_D
    s_mov_b32 s84, s56
    s_mov_b32 s85, s57
    s_mov_b32 s86, %(WOB)d
    s_lshl_b32 s10, s12, 4
    s_add_u32 s10, s10, s%(G)d
    s_mul_i32 s10, s10, 36864
    s_lshl_b32 s9, s13, 7
    s_add_u32 s10, s10, s9
    s_branch L_dg_P
    L_dg_D:
    s_mov_b32 s84, s80
    s_mov_b32 s85, s81
    s_mov_b32 s86, %(WDB)d
    s_mul_i32 s10, s12, 73728
    s_lshl_b32 s9, s%(G)d, 7
    s_add_u32 s10, s10, s9
    s_cmp_ge_u32 s%(G)d, 9
    s_cselect_b32 s9, 36864 - 1152, 0
    s_add_u32 s10, s10, s9
    L_dg_P:
    ''' % dict(G=sG, WB=WB, WOB=4096 * 576 * 2, WDB=4608 * 576 * 2))
    for k in range(4):
        a('s_mov_b32 m0, s15')
        a('buffer_load_dwordx4 v%d, s[84:87], s10 offen%s lds' % ((VD0, VD1)[k & 1], NT))
        if k < 3: a('s_add_u32 s10, s10, 9216'); a('s_add_u32 s15, s15, 1024')
    a('''
    L_dg_next:
    s_cmp_eq_u32 s%(RET)d, 0
    s_cbranch_scc1 L_qw
    s_branch L_we2
    ''' % dict(RET=sRET))

    a.label('L_tail')
    stamp(2)
    a('s_mov_b32 s91, 0')

    a.fence(4)
    a('v_mov_b32 v24, v%d' % M); a('v_mov_b32 v25, v%d' % M)
    a('v_permlane16_swap_b32 v24, v25'); a('v_max_f32 v24, v24, v25')
    a('v_mov_b32 v25, v24'); a('v_permlane32_swap_b32 v24, v25'); a('v_max_f32 v24, v24, v25')
    a('v_sub_f32 v26, v%d, v24' % M); a('v_mul_f32 v26, s88, v26'); a('v_exp_f32 v26, v26')
    for e in range(8):
        a('v_mul_f32 v%d, v%d, v26' % (ACC + e, ACC + e))
    a('v_mul_f32 v25, v%d, v26' % L)
    for e in range(4):
        a('v_permlane32_swap_b32 v%d, v%d' % (ACC + e, ACC + e + 4))
    a('v_mov_b32 v27, v25'); a('v_permlane16_swap_b32 v25, v27')
    for e in range(4):
        a('v_add_f32 v%d, v%d, v%d' % (ACC + e, ACC + e, ACC + e + 4))
    a('v_add_f32 v25, v25, v27')
    for e in range(2):
        a('v_permlane16_swap_b32 v%d, v%d' % (ACC + e, ACC + e + 2))
    a('v_mov_b32 v27, v25'); a('v_permlane32_swap_b32 v25, v27')
    for e in range(2):
        a('v_add_f32 v%d, v%d, v%d' % (ACC + e, ACC + e, ACC + e + 2))
    a('v_add_f32 v25, v25, v27')
    a('''
    v_lshlrev_b32 v40, 5, v3
    v_lshl_add_u32 v40, v2, 3, v40
    s_lshl_b32 s10, s3, 9
    v_add_u32 v40, s10, v40
    ds_write_b64 v40, v[%d:%d] offset:%d
    s_lshl_b32 s10, s3, 3
    v_mov_b32 v41, s10
    s_mov_b64 exec, 1
    ds_write_b64 v41, v[24:25] offset:%d
    ds_add_rtn_u32 v41, v4, v%d offset:%d
    s_mov_b64 exec, -1
    v_lshlrev_b32 v40, 3, v1
    s_waitcnt lgkmcnt(0)
    v_readfirstlane_b32 s10, v41
    s_cmp_eq_u32 s10, 7
    s_cbranch_scc0 L_comb_skip
    v_mov_b32 v41, 0
    ''' % (ACC, ACC + 1, WC, WML, ONE, ARR))
    for k in range(4):
        a('ds_read_b128 %s, v41 offset:%d' % (vr(24 + 4 * k, 4), WML + 16 * k))
    for k in range(8):
        a('ds_read_b64 %s, v40 offset:%d' % (vr(80 + 2 * k, 2), WC + 512 * k))
    a('s_waitcnt lgkmcnt(8)')
    a('v_max3_f32 v42, v24, v26, v28'); a('v_max3_f32 v42, v30, v32, v42'); a('v_max3_f32 v42, v34, v36, v42'); a('v_max_f32 v42, v38, v42')
    for k in range(8):
        a('v_sub_f32 v%d, v%d, v42' % (24 + 2 * k, 24 + 2 * k))
    for k in range(8):
        a('v_mul_f32 v%d, s88, v%d' % (24 + 2 * k, 24 + 2 * k))
    for k in range(8):
        a('v_exp_f32 v%d, v%d' % (24 + 2 * k, 24 + 2 * k))
    a('s_waitcnt lgkmcnt(0)')
    a('v_mul_f32 v44, v24, v80'); a('v_mul_f32 v45, v24, v81'); a('v_mul_f32 v43, v24, v25')
    for k in range(1, 8):
        a('v_fmac_f32 v44, v%d, v%d' % (24 + 2 * k, 80 + 2 * k))
        a('v_fmac_f32 v45, v%d, v%d' % (24 + 2 * k, 81 + 2 * k))
        a('v_fmac_f32 v43, v%d, v%d' % (24 + 2 * k, 25 + 2 * k))
    tagw(44); tagw(45); tagw(42); tagw(43)
    a('''
    s_lshl_b32 s10, s2, 9
    buffer_store_dwordx2 v[44:45], v40, %s, s10 offen sc1
    s_lshl_b32 s10, s2, 7
    s_add_u32 s10, s10, %d
    s_mov_b64 exec, 1
    v_mov_b32 v36, v42
    v_mov_b32 v37, v43
    v_mov_b32 v38, v42
    v_mov_b32 v39, v43
    buffer_store_dwordx4 v[36:39], v41, %s, s10 offen sc1
    s_mov_b64 exec, -1
    L_comb_skip:
    ''' % (srd(sWS), ML, srd(sWS)))
    stamp(3)
    if cfg.pub_first: a('s_barrier')
    if not cfg.early_d and cfg.static_d:
        a('''
        s_cmp_eq_u32 s11, 0
        s_cbranch_scc0 L_nod
        s_mov_b32 s%(NG)d, 0
        s_mul_i32 s10, s12, 73728
        s_mul_i32 s15, s3, 9216
        s_add_u32 s10, s10, s15
        s_lshr_b32 s15, s3, 2
        s_mul_i32 s15, s15, 36864
        s_and_b32 s9, s3, 3
        s_lshl_b32 s9, s9, 10
        s_add_u32 s15, s15, s9
        s_add_u32 s15, s15, %(WB)d
        s_bitcmp1_b32 s3, 0
        s_cselect_b64 vcc, -1, 0
        v_cndmask_b32 v40, v%(VD0)d, v%(VD1)d, vcc
        ''' % dict(NG=sNG, WB=WB, VD0=VD0, VD1=VD1))
        for k in range(9):
            a('s_mov_b32 m0, s15')
            a('buffer_load_dwordx4 v40, %s, s10 offen%s lds' % (srd(sWD), NT))
            if k < 8: a('s_add_u32 s10, s10, 128'); a('s_add_u32 s15, s15, 4096')
        a.label('L_nod')
    a('''
    s_mov_b32 s%(RET)d, 1
    L_we:
    s_cmp_lt_u32 s1, 5
    s_cbranch_scc1 L_gu
    s_cmp_ge_u32 s%(G)d, s%(NG)d
    s_cbranch_scc1 L_wdone
    s_mov_b64 exec, 1
    ds_add_rtn_u32 v42, v4, v%(ONE)d offset:%(WCTR)d
    s_mov_b64 exec, -1
    s_waitcnt lgkmcnt(0)
    v_readfirstlane_b32 s%(G)d, v42
    s_cmp_lt_u32 s%(G)d, s%(NG)d
    s_cbranch_scc1 L_dma
    s_branch L_wdone
    L_we2:
    s_waitcnt vmcnt(4)
    s_branch L_we
    L_wdone:
    ''' % dict(RET=sRET, G=sG, NG=sNG, ONE=ONE, WCTR=WCTR))
    def gu_mfma(bsrc):
        for t in range(9):
            b = bsrc(t)
            a('v_mfma_f32_16x16x32_bf16 v[24:27], %s, %s, %s' % (vr(GU + 8 * t, 4), vr(b, 4), '0' if t == 0 else 'v[24:27]'))
            a('v_mfma_f32_16x16x32_bf16 v[28:31], %s, %s, %s' % (vr(GU + 8 * t + 4, 4), vr(b, 4), '0' if t == 0 else 'v[28:31]'))
    def gu_put(off):
        for r in range(4):
            a('v_permlane32_swap_b32 v%d, v%d' % (24 + r, 28 + r))
        for r in range(4):
            a('v_add_f32_dpp v%d, v%d, v%d row_ror:8 row_mask:0xf bank_mask:0xf' % (24 + r, 28 + r, 24 + r))
        a('''
        s_mov_b32 exec_lo, 0x00ff00ff
        s_mov_b32 exec_hi, 0x00ff00ff
        ds_write_b128 v94, v[24:27] offset:%d
        s_mov_b64 exec, -1
        ''' % off)
    def gu_sum(d0, d1, w0=None, w1=None):
        if w0: a(w0)
        for r in (0, 2):
            a('v_pk_add_f32 %s, %s, %s' % (vr(24 + r, 2), vr(24 + r, 2), vr(28 + r, 2)))
        if w1: a(w1)
        for r in (0, 2):
            a('v_pk_add_f32 %s, %s, %s' % (vr(32 + r, 2), vr(32 + r, 2), vr(36 + r, 2)))
        for r in (0, 2):
            a('v_pk_add_f32 %s, %s, %s' % (vr(24 + r, 2), vr(24 + r, 2), vr(32 + r, 2)))
        a('''
        v_add_f32_dpp v%(0)d, v24, v24 row_ror:8 row_mask:0xf bank_mask:0x3
        v_add_f32_dpp v%(1)d, v25, v25 row_ror:8 row_mask:0xf bank_mask:0x3
        v_add_f32_dpp v%(0)d, v26, v26 row_ror:8 row_mask:0xf bank_mask:0xc
        v_add_f32_dpp v%(1)d, v27, v27 row_ror:8 row_mask:0xf bank_mask:0xc
        v_permlane32_swap_b32 v%(0)d, v%(1)d
        ''' % {'0': d0, '1': d1})
    a('s_cmp_eq_u32 s11, 0'); a('s_cbranch_scc0 L_nocs')
    if cfg.force_b < 5: a('s_waitcnt vmcnt(0)')
    a('''
    v_and_b32 v24, 1, v1
    v_mov_b32 v25, 0xffff
    v_mov_b32 v26, 0xffff0000
    v_cmp_eq_u32 vcc, 1, v24
    v_cndmask_b32 v25, v25, v26, vcc
    v_bfe_u32 v24, v1, 1, 2
    ''')
    for r in range(4):
        a('v_cmp_eq_u32 vcc, %d, v24' % r)
        a('v_cndmask_b32 v%d, 0, v25, vcc' % (88 + r))
    for r in range(4):
        a('v_and_b32 v%d, 0x3f803f80, v%d' % (32 + r, 88 + r))
    a('''
    v_and_b32 v41, 7, v1
    v_lshl_add_u32 v94, v2, 3, v41
    v_lshlrev_b32 v94, 4, v94
    v_bfe_u32 v40, v1, 3, 1
    v_mul_u32_u24 v97, 2176, v40
    v_add_u32 v97, v97, v94
    s_mul_i32 s15, s3, 544
    v_add_u32 v94, s15, v94
    ''')
    gu_mfma(lambda t: 32)
    gu_put(CP)
    a.label('L_nocs')
    a('s_waitcnt vmcnt(0) lgkmcnt(0)'); a('BAR')
    a('''
    v_bfe_u32 v45, v1, 2, 2
    v_and_b32 v46, 3, v1
    s_cmp_eq_u32 s11, 0
    s_cbranch_scc1 L_roleB
    s_cmp_eq_u32 s11, 1
    s_cbranch_scc1 L_roleA
    s_cmp_eq_u32 s11, 2
    s_cbranch_scc1 L_roleC
    s_branch L_FIN
    ''')
    def p128_addr(dst, ct_sreg, base):
        a('''
        v_lshl_add_u32 v%(d)d, v2, 3, v45
        v_lshlrev_b32 v%(d)d, 7, v%(d)d
        v_lshrrev_b32 v42, 1, v45
        v_and_b32 v43, 1, v2
        v_lshl_add_u32 v42, v43, 1, v42
        v_xor_b32 v42, s%(ct)d, v42
        v_lshl_add_u32 v%(d)d, v42, 5, v%(d)d
        v_lshl_add_u32 v%(d)d, v46, 3, v%(d)d
        v_add_u32 v%(d)d, %(base)d, v%(d)d
        ''' % dict(d=dst, ct=ct_sreg, base=base))
    a.label('L_roleA'); a.fence(4)
    a('''
    s_lshl_b32 s10, s12, 2
    s_lshr_b32 s15, s3, 1
    s_add_u32 s10, s10, s15
    s_lshl_b32 s15, s10, 10
    s_add_u32 s15, s15, %d
    s_lshl_b32 s10, s10, 12
    s_and_b32 s84, s3, 1
    s_lshl_b32 s84, s84, 8
    s_add_u32 s10, s10, s84
    v_lshlrev_b32 v40, 9, v2
    v_lshl_add_u32 v40, v3, 4, v40
    v_bfe_u32 v41, v1, 1, 2
    v_add_u32 v41, v41, v2
    v_and_b32 v41, 3, v41
    v_and_b32 v42, 1, v1
    v_lshl_add_u32 v41, v42, 2, v41
    v_lshlrev_b32 v41, 7, v41
    v_lshl_add_u32 v38, v3, 2, v2
    s_lshl_b32 s84, s3, 7
    v_lshl_add_u32 v38, v38, 1, s84
    v_lshlrev_b32 v39, 4, v2
    v_mul_u32_u24 v44, 18432, v2
    v_lshl_add_u32 v44, v3, 2, v44
    s_mul_i32 s9, s12, 2304
    s_lshl_b32 s84, s13, 8
    s_add_u32 s9, s9, s84
    s_lshl_b32 s84, s3, 6
    s_add_u32 s9, s9, s84
    s_add_u32 s9, s9, %d
    s_add_u32 s8, s9, %d
    ''' % (ML, YO, 4 * 18432))
    a('s_cmp_ge_u32 s3, 4'); a('s_cbranch_scc1 L_A_now')
    p128_addr(47, 3, WB)
    for ks in range(16):
        a('ds_read_b64_tr_b16 %s, v47 offset:%d' % (vr(48 + 4 * ks, 2), ks * 4096))
        a('ds_read_b64_tr_b16 %s, v47 offset:%d' % (vr(50 + 4 * ks, 2), ks * 4096 + 512))
    a.label('L_A_now')
    def A_issue(b):
        a('buffer_load_dwordx4 %s, v41, %s, s15 offen sc1' % (vr(b + 8, 4), srd(sWS)))
        a('buffer_load_dwordx4 %s, v40, %s, s10 offen sc1' % (vr(b, 4), srd(sWS)))
        a('buffer_load_dwordx4 %s, v40, %s, s10 offen offset:2048 sc1' % (vr(b + 4, 4), srd(sWS)))
    def A_got(b):
        stamp(4)
        a('v_and_b32 v32, s%d, v%d' % (sMASK, b + 8))
        a('''
        v_max_f32_dpp v34, v32, v32 quad_perm:[1,0,3,2] row_mask:0xf bank_mask:0xf
        v_max_f32_dpp v34, v34, v34 quad_perm:[2,3,0,1] row_mask:0xf bank_mask:0xf
        v_max_f32_dpp v34, v34, v34 row_half_mirror row_mask:0xf bank_mask:0xf
        v_sub_f32 v35, v32, v34
        v_mul_f32 v35, s88, v35
        v_exp_f32 v35, v35
        v_mul_f32 v36, v35, v%d
        ''' % (b + 9))
        for r in range(4):
            a('v_mul_f32_dpp v%d, v35, v%d row_newbcast:0 row_mask:0xf bank_mask:0xf' % (24 + r, b + r))
        a('v_add_f32_dpp v36, v36, v36 quad_perm:[1,0,3,2] row_mask:0xf bank_mask:0xf')
        for r in range(2):
            a('v_fmac_f32_dpp v%d, v35, v%d row_newbcast:1 row_mask:0xf bank_mask:0xf' % (24 + r, b + 4 + r))
        a('v_add_f32_dpp v36, v36, v36 quad_perm:[2,3,0,1] row_mask:0xf bank_mask:0xf')
        for r in range(2, 4):
            a('v_fmac_f32_dpp v%d, v35, v%d row_newbcast:1 row_mask:0xf bank_mask:0xf' % (24 + r, b + 4 + r))
        a('v_add_f32_dpp v36, v36, v36 row_half_mirror row_mask:0xf bank_mask:0xf')
        a('s_nop 0')
    ppoll('A', [176 + 12 * i for i in range(cfg.NP)], A_issue, lambda b: chk(range(b, b + 12), [34, 35, 36]), 3, A_got, cfg.stag)
    a('''
    v_permlane32_swap_b32 v24, v26
    v_permlane32_swap_b32 v25, v27
    v_rcp_f32 v36, v36
    v_pk_add_f32 v[24:25], v[24:25], v[26:27]
    v_permlane16_swap_b32 v24, v25
    v_add_f32 v24, v24, v25
    v_mul_f32 v36, v36, v24
    v_cvt_pk_bf16_f32 v36, v36, v36
    ds_write_b16 v38, v36 offset:%d
    s_waitcnt lgkmcnt(0)
    BAR
    s_cmp_ge_u32 s3, 4
    s_cbranch_scc1 L_FIN
    ''' % OB)
    for ks in range(16):
        a('ds_read_b128 %s, v39 offset:%d' % (vr(112 + 4 * ks, 4), OB + 64 * ks))
    for ks in range(16):
        a('s_waitcnt lgkmcnt(%d)' % min(15, 15 - ks))
        a('v_mfma_f32_16x16x32_bf16 v[24:27], %s, %s, %s' % (vr(112 + 4 * ks, 4), vr(48 + 4 * ks, 4), '0' if ks == 0 else 'v[24:27]'))
    tagw(24)
    a('buffer_store_dword v24, v44, %s, s9 offen sc1' % srd(sWS))
    a('buffer_store_dword v24, v44, %s, s8 offen sc1' % srd(sWS))
    a('s_branch L_FIN')

    a.label('L_roleB'); a.fence(4)
    a('''
    s_getreg_b32 s4, hwreg(HW_REG_XCC_ID)
    s_mov_b32 s84, 0x3ffff
    s_mov_b32 s85, 0x3ffff
    s_mul_i32 s10, s3, 144
    v_and_b32 v41, 31, v1
    v_lshrrev_b32 v43, 5, v1
    v_lshl_add_u32 v114, v41, 1, v43
    v_lshl_add_u32 v40, v114, 2, s10
    v_mov_b32 v42, %d
    v_cndmask_b32 v40, v42, v40, s[84:85]
    buffer_load_dword v44, v40, %s, 0 offen
    v_mul_u32_u24 v43, 2304, v43
    v_lshl_add_u32 v41, v41, 4, v43
    s_lshl_b32 s10, s10, 1
    v_add_u32 v41, s10, v41
    v_cndmask_b32 v41, v42, v41, s[84:85]
    v_cndmask_b32 v116, 0, v13, s[84:85]
    s_and_b32 s4, s4, 7
    s_mul_i32 s4, s4, 18432
    s_add_u32 s4, s4, %d
    s_add_u32 s5, s4, 4608
    s_add_u32 s6, s4, 9216
    s_add_u32 s7, s4, 13824
    ''' % (OOB, srd(sX), YO))
    for k in range(4):
        a('ds_read_b128 %s, v97 offset:%d' % (vr(24 + 4 * k, 4), CP + 544 * k))
    a('s_and_b32 s10, s3, 3')
    p128_addr(47, 10, WB)
    a('s_lshr_b32 s10, s3, 2'); a('s_lshl_b32 s10, s10, 12'); a('v_add_u32 v47, s10, v47'); a('v_add_u32 v43, 36864, v47')
    for m in range(5):
        for ks in range(2):
            a('ds_read_b64_tr_b16 %s, v%d offset:%d' % (vr(48 + 8 * m + 4 * ks, 2), (47, 43)[ks], m * 8192))
            a('ds_read_b64_tr_b16 %s, v%d offset:%d' % (vr(50 + 8 * m + 4 * ks, 2), (47, 43)[ks], m * 8192 + 512))
    a('''
    s_lshl_b32 s10, s3, 9
    s_add_u32 s10, s10, %(BB)d
    v_and_b32 v92, 3, v114
    v_mul_u32_u24 v92, 96, v92
    v_lshrrev_b32 v42, 2, v114
    v_lshl_add_u32 v92, v42, 2, v92
    v_add_u32 v92, s10, v92
    v_lshrrev_b32 v42, 3, v1
    v_mul_u32_u24 v93, 48, v42
    v_add_u32 v93, s10, v93
    v_and_b32 v43, 7, v1
    v_bfe_u32 v42, v1, 3, 1
    v_lshrrev_b32 v95, 5, v1
    v_lshl_add_u32 v95, v42, 1, v95
    v_lshl_add_u32 v43, v95, 3, v43
    v_and_b32 v42, 1, v2
    v_lshl_add_u32 v43, v42, 5, v43
    v_lshl_add_u32 v95, v43, 1, s10
    v_lshl_add_u32 v96, v2, 4, s10
    s_lshl_b32 s10, s3, 3
    v_mov_b32 v117, s10
    v_mov_b32 v119, 0
    v_mul_u32_u24 v118, 36864, v2
    v_lshl_add_u32 v118, v3, 2, v118
    s_mul_i32 s10, s3, 4608
    s_lshl_b32 s15, s12, 6
    s_add_u32 s10, s10, s15
    s_add_u32 s10, s10, %(OUTP)d
    s_add_u32 s15, s10, 147456
    ''' % dict(BB=BB, OUTP=OUTP))
    gu_sum(98, 99, 's_waitcnt lgkmcnt(15)', None)
    stamp(11)
    def B_issue(b):
        for p in range(4):
            a('buffer_load_dwordx4 %s, v41, %s, s%d offen sc1' % (vr(b + 4 * p, 4), srd(sWS), 4 + p))
    def B_got(b):
        for k in range(2):
            a('v_pk_add_f32 %s, %s, %s' % (vr(24 + 2 * k, 2), vr(b + 2 * k, 2), vr(b + 4 + 2 * k, 2)))
            a('v_pk_add_f32 %s, %s, %s' % (vr(28 + 2 * k, 2), vr(b + 8 + 2 * k, 2), vr(b + 12 + 2 * k, 2)))
    ppoll('B', [120 + 16 * i for i in range(cfg.NP)], B_issue, lambda b: chk(range(b, b + 16), [40, 42, 43], 'v116'), 4, B_got, cfg.stag)
    stamp(4)
    a('''
    v_pk_add_f32 v[24:25], v[24:25], v[28:29]
    v_pk_add_f32 v[28:29], v[26:27], v[30:31]
    v_lshlrev_b32 v26, 16, v44
    v_and_b32 v27, 0xffff0000, v44
    v_permlane32_swap_b32 v24, v28
    v_permlane32_swap_b32 v25, v29
    v_pk_add_f32 v[24:25], v[24:25], v[28:29]
    v_cvt_pk_bf16_f32 v28, v24, v25
    v_lshlrev_b32 v24, 16, v28
    v_and_b32 v25, 0xffff0000, v28
    v_pk_add_f32 v[24:25], v[24:25], v[26:27]
    v_cvt_pk_bf16_f32 v34, v24, v24
    v_cvt_pk_bf16_f32 v35, v25, v25
    s_mov_b64 exec, s[84:85]
    ds_write2_b32 v92, v34, v35 offset1:12
    s_mov_b64 exec, -1
    ds_read_b128 v[100:103], v93
    ds_read_b128 v[104:107], v93 offset:16
    ds_read_b32 v108, v93 offset:32
    v_and_b32 v34, 0xffff0000, v34
    v_and_b32 v35, 0xffff0000, v35
    v_add_f32 v110, v34, v35
    v_mul_f32 v111, v34, v34
    v_fmac_f32 v111, v35, v35
    ''')
    for r in (8, 4, 2, 1):
        for v in (110, 111):
            a('v_add_f32_dpp v%d, v%d, v%d row_ror:%d row_mask:0xf bank_mask:0xf' % (v, v, v, r))
    for v in (110, 111):
        a('v_add_f32_dpp v%d, v%d, v%d row_bcast:15 row_mask:0xa bank_mask:0xf' % (v, v, v))
    for v in (110, 111):
        a('v_add_f32_dpp v%d, v%d, v%d row_bcast:31 row_mask:0xc bank_mask:0xf' % (v, v, v))
    stamp(6)
    def bsel(t):
        if t in (0, 4, 8): a('s_waitcnt lgkmcnt(%d)' % ({0: 2, 4: 2, 8: 1}[t] if not cfg.stamps else 0))
        b = 32 + 4 * (t & 1)
        for r in range(4):
            a('v_and_b32 v%d, v%d, v%d' % (b + r, 100 + t, 88 + r))
        if t == 1:
            a('''
            s_mov_b32 exec_lo, 0
            s_mov_b32 exec_hi, 0x80000000
            ds_write_b64 v117, v[110:111] offset:%d
            s_mov_b64 exec, -1
            ''' % ST)
        return b
    gu_mfma(bsel)
    stamp(7)
    gu_put(GP)
    a('''
    s_waitcnt lgkmcnt(0)
    STAMP8
    BAR
    STAMP9
    ''')
    for k in range(4):
        a('ds_read_b128 %s, v119 offset:%d' % (vr(100 + 4 * k, 4), ST + 16 * k))
    for k in range(4):
        a('ds_read_b128 %s, v97 offset:%d' % (vr(24 + 4 * k, 4), GP + 544 * k))
    a('s_waitcnt lgkmcnt(%d)' % (0 if cfg.stamps else 4))
    for k in range(4):
        a('v_pk_add_f32 %s, %s, %s' % (vr(100 + 4 * k, 2), vr(100 + 4 * k, 2), vr(102 + 4 * k, 2)))
    a('''
    v_pk_add_f32 v[100:101], v[100:101], v[104:105]
    v_pk_add_f32 v[108:109], v[108:109], v[112:113]
    v_pk_add_f32 v[100:101], v[100:101], v[108:109]
    v_mul_f32 v100, %(r)s, v100
    v_mul_f32 v101, %(r)s, v101
    v_fma_f32 v101, -v100, v100, v101
    v_max_f32 v101, 0, v101
    ''' % dict(r=f32(1.0 / 576)))
    ln_finish(100, 101, 102, 103, 104, 105)
    gu_sum(28, 29, 's_waitcnt lgkmcnt(2)', 's_waitcnt lgkmcnt(0)')
    KB = 0.7978845608028654; KK = 0.044715
    a('''
    v_fma_f32 v28, -v102, v98, v28
    v_fma_f32 v29, -v102, v99, v29
    v_mul_f32 v28, v28, v104
    v_mul_f32 v29, v29, v104
    v_cvt_pk_bf16_f32 v30, v28, v29
    v_lshlrev_b32 v28, 16, v30
    v_and_b32 v29, 0xffff0000, v30
    v_mul_f32 v30, v28, v28
    v_mul_f32 v30, v30, v28
    v_mov_b32 v31, v28
    v_fmac_f32 v31, %s, v30
    v_mul_f32 v31, %s, v31
    v_exp_f32 v31, v31
    v_add_f32 v31, 1.0, v31
    v_rcp_f32 v31, v31
    v_mul_f32 v31, v28, v31
    v_cvt_pk_bf16_f32 v31, v31, v31
    v_lshlrev_b32 v31, 16, v31
    v_mul_f32 v31, v31, v29
    v_cvt_pk_bf16_f32 v31, v31, v31
    ds_write_b16 v95, v31 offset:384
    ds_read_b128 v[24:27], v96 offset:384
    ds_read_b128 v[28:31], v96 offset:448
    s_waitcnt lgkmcnt(1)
    ''' % (f32(KK), f32(-2.0 * KB * LOG2E)))
    stamp(10)
    if cfg.stamps: a('s_waitcnt lgkmcnt(0)')
    D = [32, 36, 100, 104, 108]
    for m in range(5):
        a('v_mfma_f32_16x16x32_bf16 %s, v[24:27], %s, 0' % (vr(D[m], 4), vr(48 + 8 * m, 4)))
    a('s_waitcnt lgkmcnt(0)')
    for m in range(5):
        a('v_mfma_f32_16x16x32_bf16 %s, v[28:31], %s, %s' % (vr(D[m], 4), vr(52 + 8 * m, 4), vr(D[m], 4)))
    for m in range(1, 4):
        a('v_mov_b32_dpp v%d, v%d quad_perm:[0,1,2,3] row_mask:0x%x bank_mask:0xf' % (D[0], D[m], 1 << m))
    tagw(D[0])
    a('buffer_store_dword v%d, v118, %s, s10 offen sc1' % (D[0], srd(sWS)))
    a('s_cmp_ge_u32 s3, 4'); a('s_cbranch_scc1 L_FIN')
    a('s_mov_b64 exec, 0xffff')
    tagw(D[4])
    a('buffer_store_dword v%d, v118, %s, s15 offen sc1' % (D[4], srd(sWS)))
    a('s_branch L_FIN')

    def red16(v):
        a('''
        v_permlane32_swap_b32 v%(0)d, v%(2)d
        v_permlane32_swap_b32 v%(1)d, v%(3)d
        v_pk_add_f32 v[%(0)d:%(1)d], v[%(0)d:%(1)d], v[%(2)d:%(3)d]
        v_permlane16_swap_b32 v%(0)d, v%(1)d
        v_add_f32 v%(0)d, v%(0)d, v%(1)d
        v_add_f32_dpp v%(0)d, v%(0)d, v%(0)d row_ror:8 row_mask:0xf bank_mask:0xf
        v_add_f32_dpp v%(0)d, v%(0)d, v%(0)d row_ror:4 row_mask:0xf bank_mask:0xf
        ''' % {'0': v, '1': v + 1, '2': v + 2, '3': v + 3})
    a.label('L_roleC'); a.fence(4)
    a('''
    s_cmp_ge_u32 s3, 1
    s_cbranch_scc1 L_FIN
    s_getreg_b32 s4, hwreg(HW_REG_XCC_ID)
    s_lshl_b32 s10, s12, 5
    v_lshl_add_u32 v44, v46, 2, v2
    v_lshl_add_u32 v44, v44, 1, s10
    buffer_load_ushort v43, v44, %s, 0 offen
    v_lshrrev_b32 v41, 2, v1
    v_mul_u32_u24 v40, 2304, v41
    v_lshl_add_u32 v40, v46, 4, v40
    v_mov_b32 v42, %d
    v_cmp_gt_u32 vcc, 32, v1
    v_cndmask_b32 v40, v42, v40, vcc
    v_cndmask_b32 v41, v42, v4, vcc
    v_cndmask_b32 v47, 0, v13, vcc
    s_and_b32 s4, s4, 7
    s_mul_i32 s4, s4, 18432
    s_lshl_b32 s5, s12, 6
    s_add_u32 s4, s4, s5
    s_add_u32 s4, s4, %d
    L_C_poll1:
    buffer_load_dwordx4 v[24:27], v40, %s, s4 offen sc1
    s_waitcnt vmcnt(0)
    ''' % (srd(sX), OOB, YO, srd(sWS)))
    chk(range(24, 28), [36, 37], 'v47')
    a('s_cbranch_vccz L_C_got1')
    a('s_sleep 2')
    spin_guard('L_C_poll1')
    a.label('L_C_got1')
    red16(24)
    a('''
    v_cvt_pk_bf16_f32 v24, v24, v24
    v_lshlrev_b32 v24, 16, v24
    v_lshlrev_b32 v43, 16, v43
    v_add_f32 v43, v43, v24
    v_cvt_pk_bf16_f32 v43, v43, v43
    v_lshlrev_b32 v43, 16, v43
    s_mul_i32 s4, s12, 4608
    s_add_u32 s4, s4, %d
    s_add_u32 s5, s4, 4096
    ''' % OUTP)
    def C_issue(b):
        for k in range(4):
            a('buffer_load_dwordx4 %s, v4, %s, s4 offen offset:%d sc1' % (vr(b + 4 * k, 4), srd(sWS), 1024 * k))
        a('buffer_load_dwordx4 %s, v41, %s, s5 offen sc1' % (vr(b + 16, 4), srd(sWS)))
    def C_chk(b):
        accs = [36, 37, 38]
        for k in range(20):
            ac = accs[k % 3]
            a('v_msad_u8 v%d, v%d, %s, %s' % (ac, b + k, 'v13' if k < 16 else 'v47', '0' if k < 3 else 'v%d' % ac))
        a('v_or3_b32 v36, v36, v37, v38'); a('v_cmp_ne_u32 vcc, 0, v36')
    def C_got(b):
        for k in range(2):
            a('v_pk_add_f32 %s, %s, %s' % (vr(24 + 2 * k, 2), vr(b + 2 * k, 2), vr(b + 4 + 2 * k, 2)))
            a('v_pk_add_f32 %s, %s, %s' % (vr(28 + 2 * k, 2), vr(b + 8 + 2 * k, 2), vr(b + 12 + 2 * k, 2)))
        for k in range(2):
            a('v_pk_add_f32 %s, %s, %s' % (vr(24 + 2 * k, 2), vr(24 + 2 * k, 2), vr(b + 16 + 2 * k, 2)))
    ppoll('C2', [48 + 20 * i for i in range(cfg.NPC)], C_issue, C_chk, 5, C_got, cfg.stag)
    stamp(4)
    for k in range(2):
        a('v_pk_add_f32 %s, %s, %s' % (vr(24 + 2 * k, 2), vr(24 + 2 * k, 2), vr(28 + 2 * k, 2)))
    red16(24)
    a('''
    v_cvt_pk_bf16_f32 v24, v24, v24
    v_lshlrev_b32 v24, 16, v24
    v_add_f32 v24, v24, v43
    v_cvt_pk_bf16_f32 v24, v24, v24
    s_mov_b32 exec_lo, 0x000f000f
    s_mov_b32 exec_hi, 0x000f000f
    buffer_store_short v24, v44, %s, 0 offen
    s_cmp_eq_u32 s12, 0
    s_cbranch_scc0 L_FIN
    s_mov_b64 exec, 1
    s_mov_b32 s4, %d
    buffer_store_dword v13, v4, %s, s4 offen sc1
    ''' % (srd(sOUT), EP, srd(sWS)))
    a.label('L_FIN')
    a('s_mov_b64 exec, -1')
    if cfg.dry:
        a('s_cmp_lg_u32 s%d, 0' % DRY); a('s_cbranch_scc1 L_after_dry')
    if cfg.stamps:
        a.fence(4)
        a('s_memrealtime s[4:5]')
        a('s_lshl_b32 s10, s2, 3'); a('s_add_u32 s10, s10, s3'); a('s_lshl_b32 s10, s10, 6'); a('s_add_u32 s10, s10, %d' % TS)
        a('s_waitcnt lgkmcnt(0)')
        for k in range(5):
            a('v_mov_b32 v%d, s%d' % (24 + k, 92 + 2 * k))
        a('v_mov_b32 v29, s4')
        a('s_getreg_b32 s4, hwreg(HW_REG_XCC_ID)'); a('s_and_b32 s4, s4, 15'); a('s_lshl_b32 s5, s11, 8'); a('s_or_b32 s4, s4, s5'); a('v_mov_b32 v30, s4')
        a('v_mov_b32 v31, s91')
        if cfg.prof:
            a('s_lshl_b32 s15, s2, 3'); a('s_add_u32 s15, s15, s3'); a('s_lshl_b32 s15, s15, 8'); a('s_add_u32 s15, s15, %d' % PROF)
            a('v_lshlrev_b32 v40, 2, v1'); a('buffer_store_dword v250, v40, %s, s15 offen' % srd(sWS))
        a('v_mov_b32 v40, 0'); a('s_mov_b64 exec, 1')
        a('buffer_store_dwordx4 v[24:27], v40, %s, s10 offen' % srd(sWS))
        a('buffer_store_dwordx4 v[28:31], v40, %s, s10 offen offset:16' % srd(sWS))
        for k in range(8):
            a('v_mov_b32 v%d, s%d' % (32 + k, SP[5 + k]))
        a('buffer_store_dwordx4 v[32:35], v40, %s, s10 offen offset:32' % srd(sWS))
        a('buffer_store_dwordx4 v[36:39], v40, %s, s10 offen offset:48' % srd(sWS))
    a.label('L_END')
    a('s_endpgm')
    a.raw('''.section .rodata,"a"
.p2align 6
.amdhsa_kernel %s
  .amdhsa_next_free_vgpr 256
  .amdhsa_next_free_sgpr 102
  .amdhsa_accum_offset 256
  .amdhsa_group_segment_fixed_size 0
  .amdhsa_kernarg_size 96
  .amdhsa_user_sgpr_count 2
  .amdhsa_user_sgpr_kernarg_segment_ptr 1
  .amdhsa_system_sgpr_workgroup_id_x 1
.end_amdhsa_kernel''' % KN)
    return a.text()

if __name__ == '__main__':
    out = sys.argv[1]
    kw = {}
    for arg in sys.argv[2:]:
        k, v = arg.split('=')
        kw[k] = eval(v)
    open(out, 'w').write(gen(Cfg(**kw)))
```
